```python
import torch

def _softmax(x, axis=-1):
    return torch.softmax(x, dim=axis)
def _gelu(x):
    return torch.nn.functional.gelu(x, approximate="tanh")
def _silu(x):
    return torch.nn.functional.silu(x)
def _sigmoid(x):
    return torch.sigmoid(x)
def _layernorm(x, axis=-1, eps=1e-5):
    m = x.mean(dim=axis, keepdim=True)
    v = x.var(dim=axis, keepdim=True, unbiased=False)
    return (x - m) / torch.sqrt(v + eps)
def _scatter_add(tgt, idx, src, axis=0):
    return tgt.clone().index_add_(axis, idx, src)
def _segment_sum(src, seg, n):
    out = torch.zeros((n,) + src.shape[1:], dtype=src.dtype)
    return out.index_add_(0, seg, src)
def _pad(x, pw):
    flat = tuple(v for pair in reversed(pw) for v in pair)
    return torch.nn.functional.pad(x, flat)

kernel_name = 'sequential_preLN__spectral_fnet__moe_arch_mod__prompt'

def setup_inputs():

    _w = (lambda a: (lambda t: t.to(torch.bfloat16) if t.is_floating_point() else t)(torch.as_tensor(a)))
    def _A_setup():
        B, S, D = 1, 2048, 640
        ns = torch.arange(S)[:, None] * torch.arange(S)[None, :]
        nd = torch.arange(D)[:, None] * torch.arange(D)[None, :]
        Ws_re = torch.cos(-2.0 * torch.pi * ns / S).to(float)
        Ws_im = torch.sin(-2.0 * torch.pi * ns / S).to(float)
        Wd_re = torch.cos(-2.0 * torch.pi * nd / D).to(float)
        Wd_im = torch.sin(-2.0 * torch.pi * nd / D).to(float)
        return {
            "x": _w((lambda *s: torch.randn(*s, dtype=torch.bfloat16) * 0.1)(B, S, D)),
            "dft_seq_re": _w(Ws_re),
            "dft_seq_im": _w(Ws_im),
            "dft_hid_re": _w(Wd_re),
            "dft_hid_im": _w(Wd_im),
        }
    _A_in = _A_setup()

    def _B_setup():
        B, S, D, F, C = 1, 2048, 640, 1536, 8
        return {
            "x": _w((lambda *s: torch.randn(*s, dtype=torch.bfloat16) * 0.1)(B, S, D)),
            "w_r": _w((lambda *s: torch.randn(*s, dtype=torch.bfloat16) * 1.6)(D)),
            "w_gate": _w((lambda *s: torch.randn(*s, dtype=torch.bfloat16) * 0.8)(D, F)),
            "w_up": _w((lambda *s: torch.randn(*s, dtype=torch.bfloat16) * 0.8)(D, F)),
            "w_down": _w((lambda *s: torch.randn(*s, dtype=torch.bfloat16) * 0.8)(F, D)),
        }
    _B_in = _B_setup()

    return {
        "A_x": _A_in["x"],
        "A_dft_seq_re": _A_in["dft_seq_re"],
        "A_dft_seq_im": _A_in["dft_seq_im"],
        "A_dft_hid_re": _A_in["dft_hid_re"],
        "A_dft_hid_im": _A_in["dft_hid_im"],
        "B_x": _B_in["x"],
        "B_w_r": _B_in["w_r"],
        "B_w_gate": _B_in["w_gate"],
        "B_w_up": _B_in["w_up"],
        "B_w_down": _B_in["w_down"],
    }

def reference(A_x, A_dft_seq_re, A_dft_seq_im, A_dft_hid_re, A_dft_hid_im, B_x, B_w_r, B_w_gate, B_w_up, B_w_down):
    def _A_ref(x, dft_seq_re, dft_seq_im, dft_hid_re, dft_hid_im):
        a = torch.einsum("bsd,ed->bse", x, dft_hid_re)
        b = torch.einsum("bsd,ed->bse", x, dft_hid_im)
        y = torch.einsum("ts,bse->bte", dft_seq_re, a) - torch.einsum("ts,bse->bte", dft_seq_im, b)
        return y

    def _B_ref(x, w_r, w_gate, w_up, w_down):
        B, S, D = x.shape
        C = 8
        r = x @ w_r
        idx = torch.argsort(-r, axis=-1)[:, :C]
        idx_e = (lambda x, n, axis: torch.repeat_interleave(x, n, dim=axis))(idx.reshape(B, C, 1), D, axis=2)
        x_sel = (lambda x, i, axis: torch.take_along_dim(x, i, dim=axis))(x, idx_e, axis=1)
        g = _silu(x_sel @ w_gate)
        u = x_sel @ w_up
        y = (g * u) @ w_down
        r_sel = _sigmoid((lambda x, i, axis: torch.take_along_dim(x, i, dim=axis))(r, idx, axis=1))
        y = y * r_sel.reshape(B, C, 1)
        b_off = (torch.arange(B) * S).reshape(B, 1)
        flat_idx = (idx + b_off).reshape(B * C)
        zero = (x * 0.0).reshape(B * S, D)
        upd = _scatter_add(zero, flat_idx, y.reshape(B * C, D), axis=0)
        return x + upd.reshape(B, S, D)

    x = A_x
    h = x + _A_ref(_layernorm(x, axis=-1), A_dft_seq_re, A_dft_seq_im, A_dft_hid_re, A_dft_hid_im)
    h2 = h + _B_ref(_layernorm(h, axis=-1), B_w_r, B_w_gate, B_w_up, B_w_down)
    return h2
```

```python
import sys

S, D, F = 2048, 640, 1536
WS_LN1 = 0
WS_ABT = 4 << 20
WS_P   = 16 << 20
WS_H   = 40 << 20
WS_LN2 = 44 << 20
WS_SC  = 48 << 20
WS_ACT = (48 << 20) + (64 << 10)
WS_IDX = (48 << 20) + (128 << 10)

out = []
def A(s):
    out.append("    " + s)
def L(s):
    out.append(s + ":")
def C(s):
    out.append("    ; " + s)

def srd(dst, ptr, size, off=0):
    if off:
        A(f"s_add_u32 s{dst}, s{ptr}, {off}")
        A(f"s_addc_u32 s{dst+1}, s{ptr+1}, 0")
    else:
        A(f"s_mov_b32 s{dst}, s{ptr}")
        A(f"s_mov_b32 s{dst+1}, s{ptr+1}")
    A(f"s_mov_b32 s{dst+2}, {size}")
    A(f"s_mov_b32 s{dst+3}, 0x00020000")

def kstart(name):
    out.append(f".globl {name}")
    out.append(".p2align 8")
    out.append(f".type {name},@function")
    L(name)

descs = []
def kdesc(name, vgpr, sgpr=102):
    acc = (vgpr + 3) // 4 * 4
    descs.append(f""".p2align 6
.amdhsa_kernel {name}
  .amdhsa_next_free_vgpr {vgpr}
  .amdhsa_next_free_sgpr {sgpr}
  .amdhsa_accum_offset {acc}
  .amdhsa_group_segment_fixed_size 0
  .amdhsa_kernarg_size 104
  .amdhsa_user_sgpr_count 2
  .amdhsa_user_sgpr_kernarg_segment_ptr 1
  .amdhsa_system_sgpr_workgroup_id_x 1
.end_amdhsa_kernel""")

def wave_reduce_add(regs, stmp):
    A("s_nop 1")
    for mod in ("quad_perm:[1,0,3,2]", "quad_perm:[2,3,0,1]", "row_half_mirror", "row_mirror"):
        for r in regs:
            A(f"v_add_f32_dpp v{r}, v{r}, v{r} {mod} row_mask:0xf bank_mask:0xf")
        if len(regs) < 2:
            A("s_nop 1")
        else:
            A("s_nop 0")
    for i, r in enumerate(regs):
        for j in range(4):
            A(f"v_readlane_b32 s{stmp+4*i+j}, v{r}, {16*j}")
    A("s_nop 1")
    for i, r in enumerate(regs):
        A(f"v_mov_b32 v{r}, s{stmp+4*i}")
        for j in range(1, 4):
            A(f"v_add_f32 v{r}, s{stmp+4*i+j}, v{r}")

def bf16r(dst, src, tmp=None):
    A(f"v_cvt_pk_bf16_f32 v{dst}, v{src}, v{src}")
    A(f"v_lshlrev_b32 v{dst}, 16, v{dst}")

def ln_core(X, O, T, stmp):
    A(f"v_add_f32 v{T}, v{X}, v{X+1}")
    for j in range(2, 10):
        A(f"v_add_f32 v{T}, v{T}, v{X+j}")
    wave_reduce_add([T], stmp)
    A(f"v_mul_f32 v{T}, {1.0/640.0!r}, v{T}")
    A(f"v_sub_f32 v{T+1}, v{X}, v{T}")
    A(f"v_mul_f32 v{T+2}, v{T+1}, v{T+1}")
    for j in range(1, 10):
        A(f"v_sub_f32 v{T+1}, v{X+j}, v{T}")
        A(f"v_fmac_f32 v{T+2}, v{T+1}, v{T+1}")
    wave_reduce_add([T+2], stmp)
    A(f"v_mul_f32 v{T+2}, {1.0/640.0!r}, v{T+2}")
    bf16r(T+2, T+2)
    A(f"v_add_f32 v{T+2}, 0x3727c5ac, v{T+2}")
    bf16r(T+2, T+2)
    A(f"v_sqrt_f32 v{T+2}, v{T+2}")
    A("s_nop 0")
    bf16r(T+2, T+2)
    A(f"v_rcp_f32 v{T+2}, v{T+2}")
    bf16r(T, T)
    for j in range(10):
        A(f"v_sub_f32 v{T+1}, v{X+j}, v{T}")
        bf16r(T+1, T+1)
        A(f"v_mul_f32 v{T+1}, v{T+1}, v{T+2}")
        bf16r(O+j, T+1)

def gen_ln1():
    name = "ln1_kernel"
    kstart(name)
    A("s_cmp_ge_u32 s2, 512")
    A("s_cbranch_scc1 L_ln1_end")
    A("s_load_dwordx2 s[4:5], s[0:1], 0")
    A("s_load_dwordx2 s[6:7], s[0:1], 96")
    A("v_lshrrev_b32 v1, 6, v0")
    A("v_and_b32 v2, 63, v0")
    A("s_lshl_b32 s3, s2, 2")
    A("v_add_u32 v1, s3, v1")
    A("v_mul_u32_u24 v1, 1280, v1")
    A("v_lshl_add_u32 v1, v2, 2, v1")
    A("s_waitcnt lgkmcnt(0)")
    srd(8, 4, S*D*2)
    srd(12, 6, S*D*2, WS_LN1)
    for j in range(5):
        A(f"buffer_load_dword v{10+j}, v1, s[8:11], 0 offen offset:{j*256}")
    A("s_waitcnt vmcnt(0)")
    for j in range(5):
        A(f"v_lshlrev_b32 v{20+2*j}, 16, v{10+j}")
        A(f"v_and_b32 v{21+2*j}, 0xffff0000, v{10+j}")
    ln_core(20, 30, 40, 20)
    for j in range(5):
        A(f"v_cvt_pk_bf16_f32 v{10+j}, v{30+2*j}, v{31+2*j}")
    for j in range(5):
        A(f"buffer_store_dword v{10+j}, v1, s[12:15], 0 offen offset:{j*256}")
    L("L_ln1_end")
    A("s_endpgm")
    kdesc(name, 48)

def gen_gemm(name, BM, BN, KIT, nwg, setup, epilogue, strideA, strideB):
    MT, NT = BM // 32, BN // 32
    NA, NB = BM * 8 // 256, BN * 8 // 256
    RS = 144
    BUF = (BM + BN) * RS
    vAddrA = 2
    vAddrB = vAddrA + NA
    vLW = vAddrB + NB
    vLRA = vLW + 1
    vLRB = vLRA + 1
    vT = vLRB + 1
    vL2 = vT + 4
    acc0 = 24
    fA = acc0 + MT * NT * 4
    fB = fA + 2 * MT * 4
    st = fB + 2 * NT * 4
    nv = st + (NA + NB) * 4
    kstart(name)
    A(f"s_cmp_ge_u32 s2, {nwg}")
    A(f"s_cbranch_scc1 L_{name}_end")
    setup()
    A(f"v_lshrrev_b32 v{vT}, 3, v0")
    A(f"v_and_b32 v{vT+1}, 7, v0")
    A(f"v_lshlrev_b32 v{vT+1}, 4, v{vT+1}")
    A(f"s_mov_b32 s20, {strideA}")
    A(f"s_mov_b32 s21, {strideB}")
    for i in range(NA):
        A(f"v_add_u32 v{vT+2}, {32*i}, v{vT}")
        A(f"v_mul_lo_u32 v{vAddrA+i}, v{vT+2}, s20")
        A(f"v_add_u32 v{vAddrA+i}, v{vAddrA+i}, v{vT+1}")
    for i in range(NB):
        A(f"v_add_u32 v{vT+2}, {32*i}, v{vT}")
        A(f"v_mul_lo_u32 v{vAddrB+i}, v{vT+2}, s21")
        A(f"v_add_u32 v{vAddrB+i}, v{vAddrB+i}, v{vT+1}")
    A(f"v_mul_u32_u24 v{vLW}, {RS}, v{vT}")
    A(f"v_add_u32 v{vLW}, v{vLW}, v{vT+1}")
    A(f"v_lshrrev_b32 v{vT}, 6, v0")
    A(f"v_and_b32 v{vT+1}, 15, v0")
    A(f"v_bfe_u32 v{vT+2}, v0, 4, 2")
    A(f"v_lshlrev_b32 v{vT+2}, 4, v{vT+2}")
    A(f"v_lshrrev_b32 v{vT+3}, 1, v{vT}")
    A(f"v_mul_u32_u24 v{vT+3}, {BM//2}, v{vT+3}")
    A(f"v_add_u32 v{vT+3}, v{vT+3}, v{vT+1}")
    A(f"v_mul_u32_u24 v{vLRA}, {RS}, v{vT+3}")
    A(f"v_add_u32 v{vLRA}, v{vLRA}, v{vT+2}")
    A(f"v_and_b32 v{vT+3}, 1, v{vT}")
    A(f"v_mul_u32_u24 v{vT+3}, {BN//2}, v{vT+3}")
    A(f"v_add_u32 v{vT+3}, v{vT+3}, v{vT+1}")
    A(f"v_mul_u32_u24 v{vLRB}, {RS}, v{vT+3}")
    A(f"v_add_u32 v{vLRB}, v{vLRB}, v{vT+2}")
    A(f"v_add_u32 v{vLRB}, {BM*RS}, v{vLRB}")
    A(f"v_add_u32 v{vL2}, {BUF}, v{vLW}")
    A(f"v_add_u32 v{vL2+1}, {BUF}, v{vLRA}")
    A(f"v_add_u32 v{vL2+2}, {BUF}, v{vLRB}")
    for i in range(MT * NT * 4):
        A(f"v_mov_b32 v{acc0+i}, 0")
    A("s_mov_b32 s22, 0")
    def gload():
        for i in range(NA):
            A(f"buffer_load_dwordx4 v[{st+4*i}:{st+4*i+3}], v{vAddrA+i}, s[8:11], s22 offen")
        for i in range(NB):
            A(f"buffer_load_dwordx4 v[{st+4*(NA+i)}:{st+4*(NA+i)+3}], v{vAddrB+i}, s[12:15], s22 offen")
        A("s_add_u32 s22, s22, 128")
    def lwrite(buf):
        for i in range(NA):
            A(f"ds_write_b128 v{vL2 if buf else vLW}, v[{st+4*i}:{st+4*i+3}] offset:{i*32*RS}")
        for i in range(NB):
            A(f"ds_write_b128 v{vL2 if buf else vLW}, v[{st+4*(NA+i)}:{st+4*(NA+i)+3}] offset:{BM*RS + i*32*RS}")
    def compute(buf):
        for ks in range(2):
            for m in range(MT):
                A(f"ds_read_b128 v[{fA+(ks*MT+m)*4}:{fA+(ks*MT+m)*4+3}], v{vL2+1 if buf else vLRA} offset:{m*16*RS + ks*64}")
            for n in range(NT):
                A(f"ds_read_b128 v[{fB+(ks*NT+n)*4}:{fB+(ks*NT+n)*4+3}], v{vL2+2 if buf else vLRB} offset:{n*16*RS + ks*64}")
        for ks in range(2):
            A(f"s_waitcnt lgkmcnt({MT+NT if ks == 0 else 0})")
            for m in range(MT):
                for n in range(NT):
                    a = acc0 + (m*NT+n)*4
                    A(f"v_mfma_f32_16x16x32_bf16 v[{a}:{a+3}], v[{fA+(ks*MT+m)*4}:{fA+(ks*MT+m)*4+3}], v[{fB+(ks*NT+n)*4}:{fB+(ks*NT+n)*4+3}], v[{a}:{a+3}]")
    gload()
    A("s_waitcnt vmcnt(0)")
    lwrite(0)
    gload()
    A("s_waitcnt lgkmcnt(0)")
    A("s_barrier")
    A(f"s_mov_b32 s23, 0")
    L(f"L_{name}_loop")
    for half in range(2):
        compute(half)
        A("s_waitcnt vmcnt(0)")
        lwrite(1 - half)
        gload()
        A("s_waitcnt lgkmcnt(0)")
        A("s_barrier")
    A("s_add_u32 s23, s23, 2")
    A(f"s_cmp_lt_u32 s23, {KIT}")
    A(f"s_cbranch_scc1 L_{name}_loop")
    A("s_waitcnt vmcnt(0)")
    A("s_nop 7")
    epilogue(MT, NT, acc0, vT)
    L(f"L_{name}_end")
    A("s_endpgm")
    kdesc(name, max(nv, 64))
    return 2 * BUF

def gen_gemm1():
    def setup():
        A("s_load_dwordx2 s[4:5], s[0:1], 96")
        A("s_load_dwordx4 s[24:27], s[0:1], 24")
        A("s_and_b32 s16, s2, 7")
        A("s_lshr_b32 s17, s2, 3")
        A("s_waitcnt lgkmcnt(0)")
        A("s_mul_i32 s18, s17, 81920")
        A("s_add_u32 s8, s4, s18")
        A("s_addc_u32 s9, s5, 0")
        A(f"s_sub_u32 s10, {S*D*2}, s18")
        A("s_mov_b32 s11, 0x00020000")
        A("s_cmp_lt_u32 s16, 4")
        A("s_cselect_b32 s12, s24, s26")
        A("s_cselect_b32 s13, s25, s27")
        A("s_and_b32 s18, s16, 3")
        A("s_mul_i32 s18, s18, 204800")
        A("s_add_u32 s12, s12, s18")
        A("s_addc_u32 s13, s13, 0")
        A(f"s_sub_u32 s14, {D*D*2}, s18")
        A("s_mov_b32 s15, 0x00020000")
        srd(28, 4, 1280*2048*2, WS_ABT)
    def epilogue(MT, NT, acc0, vT):
        A(f"v_lshrrev_b32 v{vT}, 6, v0")
        A(f"v_and_b32 v{vT+1}, 15, v0")
        A(f"v_and_b32 v{vT+2}, 1, v{vT}")
        A(f"v_mul_u32_u24 v{vT+2}, 80, v{vT+2}")
        A(f"v_add_u32 v{vT+1}, v{vT+1}, v{vT+2}")
        A("s_mul_i32 s18, s16, 160")
        A(f"v_add_u32 v{vT+1}, s18, v{vT+1}")
        A(f"v_lshlrev_b32 v{vT+1}, 12, v{vT+1}")
        A(f"v_lshrrev_b32 v{vT+2}, 1, v{vT}")
        A(f"v_lshlrev_b32 v{vT+2}, 5, v{vT+2}")
        A(f"v_bfe_u32 v{vT+3}, v0, 4, 2")
        A(f"v_lshl_add_u32 v{vT+2}, v{vT+3}, 2, v{vT+2}")
        A("s_lshl_b32 s18, s17, 6")
        A(f"v_add_u32 v{vT+2}, s18, v{vT+2}")
        A(f"v_lshl_add_u32 v{vT+1}, v{vT+2}, 1, v{vT+1}")
        for m in range(MT):
            for n in range(NT):
                a = acc0 + (m*NT+n)*4
                A(f"v_cvt_pk_bf16_f32 v{a}, v{a}, v{a+1}")
                A(f"v_cvt_pk_bf16_f32 v{a+1}, v{a+2}, v{a+3}")
                A(f"s_mov_b32 s18, {n*16*4096 + m*32}")
                A(f"buffer_store_dwordx2 v[{a}:{a+1}], v{vT+1}, s[28:31], s18 offen")
    return gen_gemm("gemm1_kernel", 64, 160, 10, 256, setup, epilogue, 1280, 1280)

def gen_gemm2():
    def setup():
        A("s_load_dwordx2 s[4:5], s[0:1], 96")
        A("s_load_dwordx4 s[24:27], s[0:1], 8")
        A("s_and_b32 s16, s2, 3")
        A("s_bfe_u32 s17, s2, 0x20002")
        A("s_lshr_b32 s19, s2, 4")
        A("s_waitcnt lgkmcnt(0)")
        A("s_lshr_b32 s18, s16, 1")
        A("s_mul_i32 s18, s18, 640")
        A("s_mul_i32 s20, s17, 160")
        A("s_add_u32 s18, s18, s20")
        A("s_lshl_b32 s18, s18, 12")
        A("s_and_b32 s20, s16, 1")
        A("s_lshl_b32 s21, s20, 11")
        A("s_add_u32 s18, s18, s21")
        A(f"s_add_u32 s20, s18, {WS_ABT}")
        A("s_add_u32 s8, s4, s20")
        A("s_addc_u32 s9, s5, 0")
        A(f"s_sub_u32 s10, {1280*2048*2}, s18")
        A("s_mov_b32 s11, 0x00020000")
        A("s_cmp_lt_u32 s16, 2")
        A("s_cselect_b32 s12, s24, s26")
        A("s_cselect_b32 s13, s25, s27")
        A("s_lshl_b32 s18, s19, 19")
        A("s_add_u32 s18, s18, s21")
        A("s_add_u32 s12, s12, s18")
        A("s_addc_u32 s13, s13, 0")
        A(f"s_sub_u32 s14, {S*S*2}, s18")
        A("s_mov_b32 s15, 0x00020000")
        srd(28, 4, 4*S*D*4, WS_P)
    def epilogue(MT, NT, acc0, vT):
        A(f"v_lshrrev_b32 v{vT}, 6, v0")
        A(f"v_and_b32 v{vT+1}, 15, v0")
        A(f"v_and_b32 v{vT+2}, 1, v{vT}")
        A(f"v_lshl_add_u32 v{vT+1}, v{vT+2}, 6, v{vT+1}")
        A("s_lshl_b32 s18, s19, 7")
        A("s_lshl_b32 s20, s16, 11")
        A("s_add_u32 s18, s18, s20")
        A(f"v_add_u32 v{vT+1}, s18, v{vT+1}")
        A(f"v_mul_u32_u24 v{vT+1}, 2560, v{vT+1}")
        A(f"v_lshrrev_b32 v{vT+2}, 1, v{vT}")
        A(f"v_mul_u32_u24 v{vT+2}, 80, v{vT+2}")
        A(f"v_bfe_u32 v{vT+3}, v0, 4, 2")
        A(f"v_lshl_add_u32 v{vT+2}, v{vT+3}, 2, v{vT+2}")
        A("s_mul_i32 s18, s17, 160")
        A(f"v_add_u32 v{vT+2}, s18, v{vT+2}")
        A(f"v_lshl_add_u32 v{vT+1}, v{vT+2}, 2, v{vT+1}")
        for m in range(MT):
            for n in range(NT):
                a = acc0 + (m*NT+n)*4
                A(f"s_mov_b32 s18, {n*16*2560 + m*64}")
                A(f"buffer_store_dwordx4 v[{a}:{a+3}], v{vT+1}, s[28:31], s18 offen")
    return gen_gemm("gemm2_kernel", 160, 128, 16, 256, setup, epilogue, 4096, 4096)

def gen_k3():
    name = "ln2_kernel"
    kstart(name)
    A("s_cmp_ge_u32 s2, 512")
    A("s_cbranch_scc1 L_k3_end")
    A("s_load_dwordx2 s[4:5], s[0:1], 0")
    A("s_load_dwordx2 s[6:7], s[0:1], 96")
    A("s_load_dwordx2 s[40:41], s[0:1], 48")
    A("s_load_dwordx2 s[42:43], s[0:1], 80")
    A("v_lshrrev_b32 v1, 6, v0")
    A("v_and_b32 v2, 63, v0")
    A("s_lshl_b32 s3, s2, 2")
    A("v_add_u32 v1, s3, v1")
    A("v_mul_u32_u24 v3, 1280, v1")
    A("v_lshl_add_u32 v3, v2, 2, v3")
    A("v_lshlrev_b32 v4, 1, v3")
    A("v_lshlrev_b32 v5, 2, v2")
    A("s_waitcnt lgkmcnt(0)")
    srd(8, 4, S*D*2)
    srd(12, 6, 4*S*D*4, WS_P)
    srd(16, 40, D*2)
    srd(44, 42, S*D*2)
    srd(48, 6, S*D*2, WS_H)
    srd(52, 6, S*D*2, WS_LN2)
    srd(56, 6, S*4, WS_SC)
    for j in range(5):
        A(f"buffer_load_dword v{10+j}, v3, s[8:11], 0 offen offset:{j*256}")
    for c in range(4):
        A(f"s_mov_b32 s3, {c*S*D*4}")
        for j in range(5):
            A(f"buffer_load_dwordx2 v[{20+(c*5+j)*2}:{21+(c*5+j)*2}], v4, s[12:15], s3 offen offset:{j*512}")
    for j in range(5):
        A(f"buffer_load_dword v{60+j}, v5, s[16:19], 0 offen offset:{j*256}")
    A("s_waitcnt vmcnt(0)")
    for j in range(5):
        for q in range(2):
            p0, p1, p2, p3 = [20+(c*5+j)*2+q for c in range(4)]
            A(f"v_add_f32 v6, v{p0}, v{p1}")
            bf16r(6, 6)
            A(f"v_add_f32 v7, v{p2}, v{p3}")
            bf16r(7, 7)
            A("v_sub_f32 v6, v6, v7")
            bf16r(6, 6)
            if q == 0:
                A(f"v_lshlrev_b32 v7, 16, v{10+j}")
            else:
                A(f"v_and_b32 v7, 0xffff0000, v{10+j}")
            A("v_add_f32 v6, v7, v6")
            bf16r(70+2*j+q, 6)
    ln_core(70, 80, 90, 20)
    for j in range(5):
        A(f"v_lshlrev_b32 v6, 16, v{60+j}")
        A(f"v_and_b32 v7, 0xffff0000, v{60+j}")
        if j == 0:
            A("v_mul_f32 v8, v6, v80")
        else:
            A(f"v_fmac_f32 v8, v6, v{80+2*j}")
        A(f"v_fmac_f32 v8, v7, v{81+2*j}")
    wave_reduce_add([8], 20)
    bf16r(8, 8)
    A("v_lshlrev_b32 v9, 2, v1")
    A("v_cmp_eq_u32 vcc, 0, v2")
    A("s_and_saveexec_b64 s[60:61], vcc")
    A("buffer_store_dword v8, v9, s[56:59], 0 offen")
    A("s_mov_b64 exec, s[60:61]")
    for j in range(5):
        A(f"v_cvt_pk_bf16_f32 v6, v{70+2*j}, v{71+2*j}")
        A(f"buffer_store_dword v6, v3, s[48:51], 0 offen offset:{j*256}")
        A(f"v_cvt_pk_bf16_f32 v7, v{80+2*j}, v{81+2*j}")
        A(f"buffer_store_dword v7, v3, s[52:55], 0 offen offset:{j*256}")
        A(f"v_add_f32 v8, v{70+2*j}, v{80+2*j}")
        A(f"v_add_f32 v9, v{71+2*j}, v{81+2*j}")
        A(f"v_cvt_pk_bf16_f32 v8, v8, v9")
        A(f"buffer_store_dword v8, v3, s[44:47], 0 offen offset:{j*256}")
    L("L_k3_end")
    A("s_endpgm")
    kdesc(name, 96)

def top8(sc_srd, lds_base, sidx):
    A("v_lshlrev_b32 v1, 5, v0")
    A(f"buffer_load_dwordx4 v[4:7], v1, s[{sc_srd}:{sc_srd+3}], 0 offen")
    A(f"buffer_load_dwordx4 v[8:11], v1, s[{sc_srd}:{sc_srd+3}], 0 offen offset:16")
    A("v_lshlrev_b32 v2, 3, v0")
    A("v_sub_u32 v2, 2047, v2")
    A("v_lshrrev_b32 v3, 6, v0")
    A(f"v_lshlrev_b32 v3, 2, v3")
    A(f"v_add_u32 v3, {lds_base}, v3")
    A(f"v_mov_b32 v13, {lds_base}")
    A("s_waitcnt vmcnt(0)")
    for i in range(8):
        A(f"v_ashrrev_i32 v12, 31, v{4+i}")
        A(f"v_or_b32 v12, 0x80000000, v12")
        A(f"v_xor_b32 v{4+i}, v{4+i}, v12")
        A(f"v_and_b32 v{4+i}, 0xffff0000, v{4+i}")
        A(f"v_subrev_u32 v12, {i}, v2")
        A(f"v_or_b32 v{4+i}, v{4+i}, v12")
    for r in range(8):
        A("v_max3_u32 v12, v4, v5, v6")
        A("v_max3_u32 v12, v12, v7, v8")
        A("v_max3_u32 v12, v12, v9, v10")
        A("v_max_u32 v12, v12, v11")
        A("s_nop 1")
        for mod in ("quad_perm:[1,0,3,2]", "quad_perm:[2,3,0,1]", "row_half_mirror", "row_mirror"):
            A(f"v_max_u32_dpp v12, v12, v12 {mod} row_mask:0xf bank_mask:0xf")
            A("s_nop 1")
        for j in range(4):
            A(f"v_readlane_b32 s{60+j}, v12, {16*j}")
        A("s_max_u32 s60, s60, s61")
        A("s_max_u32 s62, s62, s63")
        A("s_max_u32 s60, s60, s62")
        A("v_mov_b32 v12, s60")
        A(f"ds_write_b32 v3, v12 offset:{(r&1)*16}")
        A("s_waitcnt lgkmcnt(0)")
        A("s_barrier")
        A(f"ds_read_b128 v[16:19], v13 offset:{(r&1)*16}")
        A("s_waitcnt lgkmcnt(0)")
        A("v_max3_u32 v12, v16, v17, v18")
        A("v_max_u32 v12, v12, v19")
        A("s_nop 0")
        A("v_readfirstlane_b32 s60, v12")
        A("s_and_b32 s61, s60, 0x7ff")
        A(f"s_sub_u32 s{sidx+r}, 2047, s61")
        for i in range(8):
            A(f"v_cmp_ne_u32 vcc, s60, v{4+i}")
            A("s_nop 1")
            A(f"v_cndmask_b32 v{4+i}, 0, v{4+i}, vcc")

def gen_k4():
    name = "ffn1_kernel"
    kstart(name)
    A("s_cmp_ge_u32 s2, 48")
    A("s_cbranch_scc1 L_k4_end")
    A("s_load_dwordx2 s[6:7], s[0:1], 96")
    A("s_load_dwordx4 s[40:43], s[0:1], 56")
    A("s_waitcnt lgkmcnt(0)")
    srd(8, 6, S*4, WS_SC)
    srd(12, 6, S*D*2, WS_LN2)
    srd(16, 40, D*F*2)
    srd(20, 42, D*F*2)
    srd(24, 6, 8*F*4, WS_ACT)
    srd(28, 6, 32, WS_IDX)
    XB = 64
    RB = XB + 20480
    top8(8, 0, 32)
    A("s_cmp_lg_u32 s2, 0")
    A("s_cbranch_scc1 L_k4_noidx")
    for t in range(8):
        A(f"v_mov_b32 v1, s{32+t}")
        A(f"v_mov_b32 v2, {4*t}")
        A("v_cmp_eq_u32 vcc, 0, v0")
        A("s_and_saveexec_b64 s[60:61], vcc")
        A("buffer_store_dword v1, v2, s[28:31], 0 offen")
        A("s_mov_b64 exec, s[60:61]")
    L("L_k4_noidx")
    A("v_cmp_gt_u32 vcc, 160, v0")
    A("s_and_saveexec_b64 s[60:61], vcc")
    A("v_lshlrev_b32 v1, 3, v0")
    A("v_lshlrev_b32 v2, 7, v0")
    for t in range(8):
        A(f"s_mul_i32 s3, s{32+t}, 1280")
        A(f"buffer_load_dwordx2 v[{4+2*t}:{5+2*t}], v1, s[12:15], s3 offen")
    A("s_waitcnt vmcnt(0)")
    for t in range(8):
        A(f"v_lshlrev_b32 v20, 16, v{4+2*t}")
        A(f"v_and_b32 v21, 0xffff0000, v{4+2*t}")
        A(f"v_lshlrev_b32 v22, 16, v{5+2*t}")
        A(f"v_and_b32 v23, 0xffff0000, v{5+2*t}")
        for q in range(4):
            A(f"ds_write_b32 v2, v{20+q} offset:{XB + q*32 + t*4}")
    A("s_mov_b64 exec, s[60:61]")
    A("v_lshrrev_b32 v1, 4, v0")
    A("v_and_b32 v2, 15, v0")
    A("v_mul_u32_u24 v3, 3072, v1")
    A("v_lshl_add_u32 v3, v2, 2, v3")
    A("s_lshl_b32 s3, s2, 6")
    A("v_add_u32 v3, s3, v3")
    A("v_lshlrev_b32 v4, 5, v1")
    W0 = 40
    for it in range(40):
        A(f"s_mov_b32 s3, {it*16*3072}")
        A(f"buffer_load_dword v{W0+2*it}, v3, s[16:19], s3 offen")
        A(f"buffer_load_dword v{W0+2*it+1}, v3, s[20:23], s3 offen")
    A("s_waitcnt lgkmcnt(0)")
    A("s_barrier")
    ACC = 8
    for i in range(32):
        A(f"v_mov_b32 v{ACC+i}, 0")
    XR = 120
    for it in range(40):
        A(f"ds_read_b128 v[{XR}:{XR+3}], v4 offset:{XB + it*16*32}")
        A(f"ds_read_b128 v[{XR+4}:{XR+7}], v4 offset:{XB + it*16*32 + 16}")
        A(f"s_waitcnt vmcnt({min(63, 78-2*it)}) lgkmcnt(0)")
        for mat in range(2):
            w = W0 + 2*it + mat
            A(f"v_lshlrev_b32 v5, 16, v{w}")
            A(f"v_and_b32 v6, 0xffff0000, v{w}")
            for t in range(8):
                A(f"v_fmac_f32 v{ACC+(mat*2+0)*8+t}, v5, v{XR+t}")
                A(f"v_fmac_f32 v{ACC+(mat*2+1)*8+t}, v6, v{XR+t}")
    A("v_lshlrev_b32 v5, 11, v1")
    A("v_lshl_add_u32 v5, v2, 2, v5")
    for i in range(32):
        A(f"ds_write_b32 v5, v{ACC+i} offset:{RB + i*64}")
    A("s_waitcnt lgkmcnt(0)")
    A("s_barrier")
    A("v_lshrrev_b32 v1, 5, v0")
    A("v_and_b32 v2, 31, v0")
    A("v_and_b32 v3, 1, v2")
    A("v_lshl_add_u32 v3, v3, 3, v1")
    A("v_lshlrev_b32 v3, 6, v3")
    A("v_lshrrev_b32 v4, 1, v2")
    A("v_lshl_add_u32 v3, v4, 2, v3")
    for kq in range(16):
        A(f"ds_read_b32 v{8+kq}, v3 offset:{RB + kq*2048}")
        A(f"ds_read_b32 v{24+kq}, v3 offset:{RB + kq*2048 + 16*64}")
    A("s_waitcnt lgkmcnt(0)")
    for kq in range(1, 16):
        A(f"v_add_f32 v8, v8, v{8+kq}")
        A(f"v_add_f32 v24, v24, v{24+kq}")
    bf16r(8, 8)
    bf16r(24, 24)
    A("v_mul_f32 v9, 0xbfb8aa3b, v8")
    A("v_exp_f32 v9, v9")
    A("s_nop 0")
    A("v_add_f32 v9, 1.0, v9")
    A("v_rcp_f32 v9, v9")
    A("s_nop 0")
    A("v_mul_f32 v9, v8, v9")
    bf16r(9, 9)
    A("v_mul_f32 v9, v9, v24")
    bf16r(9, 9)
    A("v_mul_u32_u24 v4, 1536, v1")
    A("v_add_u32 v4, v4, v2")
    A("s_lshl_b32 s3, s2, 5")
    A("v_add_u32 v4, s3, v4")
    A("v_lshlrev_b32 v4, 2, v4")
    A("buffer_store_dword v9, v4, s[24:27], 0 offen")
    L("L_k4_end")
    A("s_endpgm")
    kdesc(name, 128)
    return RB + 32768

def gen_k5():
    name = "ffn2_kernel"
    kstart(name)
    A("s_cmp_ge_u32 s2, 20")
    A("s_cbranch_scc1 L_k5_end")
    A("s_load_dwordx2 s[6:7], s[0:1], 96")
    A("s_load_dwordx4 s[40:43], s[0:1], 72")
    A("s_waitcnt lgkmcnt(0)")
    srd(8, 6, S*4, WS_SC)
    srd(12, 6, S*D*2, WS_LN2)
    srd(16, 40, D*F*2)
    srd(20, 42, S*D*2)
    srd(24, 6, 8*F*4, WS_ACT)
    srd(28, 6, 32, WS_IDX)
    srd(44, 6, S*D*2, WS_H)
    XB = 0
    RB = 49152
    A("v_lshlrev_b32 v1, 2, v0")
    A("v_lshlrev_b32 v2, 5, v0")
    for i in range(6):
        for t in range(8):
            A(f"buffer_load_dword v{8+i*8+t}, v1, s[24:27], 0 offen offset:{i*1024}" if t == 0 and False else
              f"s_mov_b32 s3, {t*F*4 + i*1024}")
            A(f"buffer_load_dword v{8+i*8+t}, v1, s[24:27], s3 offen")
    A("s_waitcnt vmcnt(0)")
    for i in range(6):
        for t in range(8):
            A(f"ds_write_b32 v2, v{8+i*8+t} offset:{XB + i*8192 + t*4}")
    A("v_lshrrev_b32 v1, 4, v0")
    A("v_and_b32 v2, 15, v0")
    A("v_mul_u32_u24 v3, 1280, v1")
    A("v_lshl_add_u32 v3, v2, 2, v3")
    A("s_lshl_b32 s3, s2, 6")
    A("v_add_u32 v3, s3, v3")
    A("v_lshlrev_b32 v4, 5, v1")
    W0 = 40
    for it in range(96):
        A(f"s_mov_b32 s3, {it*16*1280}")
        A(f"buffer_load_dword v{W0+it}, v3, s[16:19], s3 offen")
    A("s_waitcnt lgkmcnt(0)")
    A("s_barrier")
    ACC = 8
    for i in range(16):
        A(f"v_mov_b32 v{ACC+i}, 0")
    XR = 140
    for it in range(96):
        A(f"ds_read_b128 v[{XR}:{XR+3}], v4 offset:{XB + it*16*32}")
        A(f"ds_read_b128 v[{XR+4}:{XR+7}], v4 offset:{XB + it*16*32 + 16}")
        A(f"s_waitcnt vmcnt({min(63, 95-it)}) lgkmcnt(0)")
        w = W0 + it
        A(f"v_lshlrev_b32 v5, 16, v{w}")
        A(f"v_and_b32 v6, 0xffff0000, v{w}")
        for t in range(8):
            A(f"v_fmac_f32 v{ACC+t}, v5, v{XR+t}")
            A(f"v_fmac_f32 v{ACC+8+t}, v6, v{XR+t}")
    A("v_lshlrev_b32 v5, 10, v1")
    A("v_lshl_add_u32 v5, v2, 2, v5")
    for i in range(16):
        A(f"ds_write_b32 v5, v{ACC+i} offset:{RB + i*64}")
    A("s_waitcnt lgkmcnt(0)")
    A("s_barrier")
    A("v_lshrrev_b32 v1, 5, v0")
    A("v_and_b32 v2, 31, v0")
    A("v_and_b32 v3, 1, v2")
    A("v_lshl_add_u32 v3, v3, 3, v1")
    A("v_lshlrev_b32 v3, 6, v3")
    A("v_lshrrev_b32 v4, 1, v2")
    A("v_lshl_add_u32 v3, v4, 2, v3")
    for kq in range(16):
        A(f"ds_read_b32 v{8+kq}, v3 offset:{RB + kq*1024}")
    A("v_lshlrev_b32 v4, 2, v1")
    A("buffer_load_dword v5, v4, s[28:31], 0 offen")
    A("s_waitcnt vmcnt(0) lgkmcnt(0)")
    for kq in range(1, 16):
        A(f"v_add_f32 v8, v8, v{8+kq}")
    bf16r(8, 8)
    A("v_lshlrev_b32 v6, 2, v5")
    A("buffer_load_dword v9, v6, s[8:11], 0 offen")
    A("v_mul_u32_u24 v6, 1280, v5")
    A("s_lshl_b32 s3, s2, 6")
    A("v_lshl_add_u32 v7, v2, 1, s3")
    A("v_add_u32 v6, v6, v7")
    A("buffer_load_ushort v10, v6, s[12:15], 0 offen")
    A("buffer_load_ushort v11, v6, s[44:47], 0 offen")
    A("s_waitcnt vmcnt(0)")
    A("v_mul_f32 v9, 0xbfb8aa3b, v9")
    A("v_exp_f32 v9, v9")
    A("s_nop 0")
    A("v_add_f32 v9, 1.0, v9")
    A("v_rcp_f32 v9, v9")
    A("s_nop 0")
    bf16r(9, 9)
    A("v_mul_f32 v8, v8, v9")
    bf16r(8, 8)
    A("v_lshlrev_b32 v10, 16, v10")
    A("v_lshlrev_b32 v11, 16, v11")
    A("v_add_f32 v8, v10, v8")
    bf16r(8, 8)
    A("v_add_f32 v8, v11, v8")
    A("v_cvt_pk_bf16_f32 v8, v8, v8")
    A("buffer_store_short v8, v6, s[20:23], 0 offen")
    L("L_k5_end")
    A("s_endpgm")
    kdesc(name, 152)
    return RB + 16384

hdr = open('sequential_preLN__spectral_fnet__moe_arch_mod__prompt.s.ref').read().split('\n')
hdr = [l for l in hdr if l.startswith(';') and '@launch' not in l]
gen_ln1()
lds1 = gen_gemm1()
lds2 = gen_gemm2()
gen_k3()
lds4 = gen_k4()
lds5 = gen_k5()
launch = [
    "; @launch kernel=ln1_kernel grid=(512,1,1) block=(256,1,1) lds=0",
    f"; @launch kernel=gemm1_kernel grid=(256,1,1) block=(256,1,1) lds={lds1}",
    f"; @launch kernel=gemm2_kernel grid=(256,1,1) block=(256,1,1) lds={lds2}",
    "; @launch kernel=ln2_kernel grid=(512,1,1) block=(256,1,1) lds=0",
    f"; @launch kernel=ffn1_kernel grid=(48,1,1) block=(256,1,1) lds={lds4}",
    f"; @launch kernel=ffn2_kernel grid=(20,1,1) block=(256,1,1) lds={lds5}",
]
txt = "\n".join(hdr + launch + ['.amdgcn_target "amdgcn-amd-amdhsa--gfx950"', ".text"] + out +
                ['.section .rodata,"a"'] + descs) + "\n"
open(sys.argv[1] if len(sys.argv) > 1 else 'sequential_preLN__spectral_fnet__moe_arch_mod__prompt.s', 'w').write(txt)
print("ok", len(txt))
```

```python
import sys

S, D, F = 2048, 640, 1536
WS_LN1 = 0
WS_ABT = 4 << 20
WS_P   = 16 << 20
WS_H   = 40 << 20
WS_LN2 = 44 << 20
WS_SC  = 48 << 20
WS_ACT = (48 << 20) + (64 << 10)
WS_IDX = (48 << 20) + (128 << 10)

out = []
def A(s):
    out.append("    " + s)
def L(s):
    out.append(s + ":")
def C(s):
    out.append("    ; " + s)

def srd(dst, ptr, size, off=0):
    if off:
        A(f"s_add_u32 s{dst}, s{ptr}, {off}")
        A(f"s_addc_u32 s{dst+1}, s{ptr+1}, 0")
    else:
        A(f"s_mov_b32 s{dst}, s{ptr}")
        A(f"s_mov_b32 s{dst+1}, s{ptr+1}")
    A(f"s_mov_b32 s{dst+2}, {size}")
    A(f"s_mov_b32 s{dst+3}, 0x00020000")

def kstart(name):
    out.append(f".globl {name}")
    out.append(".p2align 8")
    out.append(f".type {name},@function")
    L(name)

descs = []
def kdesc(name, vgpr, sgpr=102):
    acc = (vgpr + 3) // 4 * 4
    descs.append(f""".p2align 6
.amdhsa_kernel {name}
  .amdhsa_next_free_vgpr {vgpr}
  .amdhsa_next_free_sgpr {sgpr}
  .amdhsa_accum_offset {acc}
  .amdhsa_group_segment_fixed_size 0
  .amdhsa_kernarg_size 104
  .amdhsa_user_sgpr_count 2
  .amdhsa_user_sgpr_kernarg_segment_ptr 1
  .amdhsa_system_sgpr_workgroup_id_x 1
.end_amdhsa_kernel""")

def wave_reduce_add(regs, stmp):
    A("s_nop 1")
    for mod in ("quad_perm:[1,0,3,2]", "quad_perm:[2,3,0,1]", "row_half_mirror", "row_mirror"):
        for r in regs:
            A(f"v_add_f32_dpp v{r}, v{r}, v{r} {mod} row_mask:0xf bank_mask:0xf")
        if len(regs) < 2:
            A("s_nop 1")
        else:
            A("s_nop 0")
    for i, r in enumerate(regs):
        for j in range(4):
            A(f"v_readlane_b32 s{stmp+4*i+j}, v{r}, {16*j}")
    A("s_nop 1")
    for i, r in enumerate(regs):
        A(f"v_mov_b32 v{r}, s{stmp+4*i}")
        for j in range(1, 4):
            A(f"v_add_f32 v{r}, s{stmp+4*i+j}, v{r}")

def bf16r(dst, src, tmp=None):
    A(f"v_cvt_pk_bf16_f32 v{dst}, v{src}, v{src}")
    A(f"v_lshlrev_b32 v{dst}, 16, v{dst}")

def ln_core(X, O, T, stmp):
    A(f"v_add_f32 v{T}, v{X}, v{X+1}")
    for j in range(2, 10):
        A(f"v_add_f32 v{T}, v{T}, v{X+j}")
    wave_reduce_add([T], stmp)
    A(f"v_mul_f32 v{T}, {1.0/640.0!r}, v{T}")
    A(f"v_sub_f32 v{T+1}, v{X}, v{T}")
    A(f"v_mul_f32 v{T+2}, v{T+1}, v{T+1}")
    for j in range(1, 10):
        A(f"v_sub_f32 v{T+1}, v{X+j}, v{T}")
        A(f"v_fmac_f32 v{T+2}, v{T+1}, v{T+1}")
    wave_reduce_add([T+2], stmp)
    A(f"v_mul_f32 v{T+2}, {1.0/640.0!r}, v{T+2}")
    bf16r(T+2, T+2)
    A(f"v_add_f32 v{T+2}, 0x3727c5ac, v{T+2}")
    bf16r(T+2, T+2)
    A(f"v_sqrt_f32 v{T+2}, v{T+2}")
    A("s_nop 0")
    bf16r(T+2, T+2)
    A(f"v_rcp_f32 v{T+2}, v{T+2}")
    bf16r(T, T)
    for j in range(10):
        A(f"v_sub_f32 v{T+1}, v{X+j}, v{T}")
        bf16r(T+1, T+1)
        A(f"v_mul_f32 v{T+1}, v{T+1}, v{T+2}")
        bf16r(O+j, T+1)

def gen_ln1():
    name = "ln1_kernel"
    kstart(name)
    A("s_cmp_ge_u32 s2, 512")
    A("s_cbranch_scc1 L_ln1_end")
    A("s_load_dwordx2 s[4:5], s[0:1], 0")
    A("s_load_dwordx2 s[6:7], s[0:1], 96")
    A("v_lshrrev_b32 v1, 6, v0")
    A("v_and_b32 v2, 63, v0")
    A("s_lshl_b32 s3, s2, 2")
    A("v_add_u32 v1, s3, v1")
    A("v_mul_u32_u24 v1, 1280, v1")
    A("v_lshl_add_u32 v1, v2, 2, v1")
    A("s_waitcnt lgkmcnt(0)")
    srd(8, 4, S*D*2)
    srd(12, 6, S*D*2, WS_LN1)
    for j in range(5):
        A(f"buffer_load_dword v{10+j}, v1, s[8:11], 0 offen offset:{j*256}")
    A("s_waitcnt vmcnt(0)")
    for j in range(5):
        A(f"v_lshlrev_b32 v{20+2*j}, 16, v{10+j}")
        A(f"v_and_b32 v{21+2*j}, 0xffff0000, v{10+j}")
    ln_core(20, 30, 40, 20)
    for j in range(5):
        A(f"v_cvt_pk_bf16_f32 v{10+j}, v{30+2*j}, v{31+2*j}")
    for j in range(5):
        A(f"buffer_store_dword v{10+j}, v1, s[12:15], 0 offen offset:{j*256}")
    L("L_ln1_end")
    A("s_endpgm")
    kdesc(name, 48)

def gen_gemm(name, BM, BN, KIT, nwg, setup, epilogue, strideA, strideB, NST=4):
    MT, NT = BM // 32, BN // 32
    CA, CB = BM // 8, BN // 8
    NA, NB = CA // 4, CB // 4
    NL = NA + NB
    STG = (BM + BN) * 128
    vOA, vOB = 1, 2
    vR = 3
    vT = 11
    acc0 = 16
    fA = acc0 + MT * NT * 4
    fB = fA + 2 * MT * 4
    nv = fB + 2 * NT * 4
    kstart(name)
    A(f"s_cmp_ge_u32 s2, {nwg}")
    A(f"s_cbranch_scc1 L_{name}_end")
    setup()
    A(f"v_lshrrev_b32 v{vT}, 6, v0")
    A("s_nop 0")
    A(f"v_readfirstlane_b32 s32, v{vT}")
    A("s_lshl_b32 s33, s32, 10")
    A(f"s_mul_i32 s34, s32, {8*strideA}")
    A(f"s_mul_i32 s35, s32, {8*strideB}")
    A(f"v_bfe_u32 v{vT+1}, v0, 3, 3")
    A(f"v_and_b32 v{vT+2}, 7, v0")
    A(f"v_xor_b32 v{vT+2}, v{vT+2}, v{vT+1}")
    A(f"v_lshlrev_b32 v{vT+2}, 4, v{vT+2}")
    A(f"s_mov_b32 s20, {strideA}")
    A(f"s_mov_b32 s21, {strideB}")
    A(f"v_mul_lo_u32 v{vOA}, v{vT+1}, s20")
    A(f"v_add_u32 v{vOA}, v{vOA}, v{vT+2}")
    A(f"v_mul_lo_u32 v{vOB}, v{vT+1}, s21")
    A(f"v_add_u32 v{vOB}, v{vOB}, v{vT+2}")
    A(f"v_and_b32 v{vT+1}, 15, v0")
    A(f"v_bfe_u32 v{vT+2}, v0, 4, 2")
    A(f"v_and_b32 v{vT+3}, 7, v0")
    A(f"v_xor_b32 v{vT+2}, v{vT+2}, v{vT+3}")
    A(f"v_lshlrev_b32 v{vT+2}, 4, v{vT+2}")
    A(f"v_lshrrev_b32 v{vT+3}, 1, v{vT}")
    A(f"v_mul_u32_u24 v{vT+3}, {BM//2}, v{vT+3}")
    A(f"v_add_u32 v{vT+3}, v{vT+3}, v{vT+1}")
    A(f"v_lshl_add_u32 v{vR}, v{vT+3}, 7, v{vT+2}")
    A(f"v_xor_b32 v{vR+1}, 64, v{vR}")
    A(f"v_and_b32 v{vT+3}, 1, v{vT}")
    A(f"v_mul_u32_u24 v{vT+3}, {BN//2}, v{vT+3}")
    A(f"v_add_u32 v{vT+3}, v{vT+3}, v{vT+1}")
    A(f"v_lshl_add_u32 v{vR+2}, v{vT+3}, 7, v{vT+2}")
    A(f"v_add_u32 v{vR+2}, {BM*128}, v{vR+2}")
    A(f"v_xor_b32 v{vR+3}, 64, v{vR+2}")
    for i in range(4):
        A(f"v_add_u32 v{vR+4+i}, {2*STG}, v{vR+i}")
    for i in range(MT * NT * 4):
        A(f"v_mov_b32 v{acc0+i}, 0")
    def gload(t):
        st = t % NST
        for i in range(NA):
            A(f"s_add_u32 m0, s33, {st*STG + i*4096}")
            A(f"s_add_u32 s22, s34, {t*128 + i*32*strideA}")
            A(f"buffer_load_dwordx4 v{vOA}, s[8:11], s22 offen lds")
        for i in range(NB):
            A(f"s_add_u32 m0, s33, {st*STG + BM*128 + i*4096}")
            A(f"s_add_u32 s22, s35, {t*128 + i*32*strideB}")
            A(f"buffer_load_dwordx4 v{vOB}, s[12:15], s22 offen lds")
    def compute(t):
        st = t % NST
        h = 4 if st >= 2 else 0
        base = (st & 1) * STG
        for ks in range(2):
            for m in range(MT):
                A(f"ds_read_b128 v[{fA+(ks*MT+m)*4}:{fA+(ks*MT+m)*4+3}], v{vR+h+ks} offset:{base + m*2048}")
            for n in range(NT):
                A(f"ds_read_b128 v[{fB+(ks*NT+n)*4}:{fB+(ks*NT+n)*4+3}], v{vR+h+2+ks} offset:{base + n*2048}")
        for ks in range(2):
            A(f"s_waitcnt lgkmcnt({MT+NT if ks == 0 else 0})")
            for m in range(MT):
                for n in range(NT):
                    a = acc0 + (m*NT+n)*4
                    A(f"v_mfma_f32_16x16x32_bf16 v[{a}:{a+3}], v[{fA+(ks*MT+m)*4}:{fA+(ks*MT+m)*4+3}], v[{fB+(ks*NT+n)*4}:{fB+(ks*NT+n)*4+3}], v[{a}:{a+3}]")
    for t in range(min(NST-1, KIT)):
        gload(t)
    for t in range(KIT):
        issued = min(t + NST - 1, KIT)
        A(f"s_waitcnt vmcnt({(issued - (t+1)) * NL})")
        A("s_barrier")
        if t + NST - 1 < KIT:
            gload(t + NST - 1)
        compute(t)
    A("s_nop 7")
    epilogue(MT, NT, acc0, vT)
    L(f"L_{name}_end")
    A("s_endpgm")
    kdesc(name, max(nv, 64))
    return NST * STG

def gen_gemm1():
    def setup():
        A("s_load_dwordx2 s[4:5], s[0:1], 96")
        A("s_load_dwordx4 s[24:27], s[0:1], 24")
        A("s_and_b32 s16, s2, 7")
        A("s_lshr_b32 s17, s2, 3")
        A("s_waitcnt lgkmcnt(0)")
        A("s_mul_i32 s18, s17, 81920")
        A("s_add_u32 s8, s4, s18")
        A("s_addc_u32 s9, s5, 0")
        A(f"s_sub_u32 s10, {S*D*2}, s18")
        A("s_mov_b32 s11, 0x00020000")
        A("s_cmp_lt_u32 s16, 4")
        A("s_cselect_b32 s12, s24, s26")
        A("s_cselect_b32 s13, s25, s27")
        A("s_and_b32 s18, s16, 3")
        A("s_mul_i32 s18, s18, 204800")
        A("s_add_u32 s12, s12, s18")
        A("s_addc_u32 s13, s13, 0")
        A(f"s_sub_u32 s14, {D*D*2}, s18")
        A("s_mov_b32 s15, 0x00020000")
        srd(28, 4, 1280*2048*2, WS_ABT)
    def epilogue(MT, NT, acc0, vT):
        A(f"v_lshrrev_b32 v{vT}, 6, v0")
        A(f"v_and_b32 v{vT+1}, 15, v0")
        A(f"v_and_b32 v{vT+2}, 1, v{vT}")
        A(f"v_mul_u32_u24 v{vT+2}, 80, v{vT+2}")
        A(f"v_add_u32 v{vT+1}, v{vT+1}, v{vT+2}")
        A("s_mul_i32 s18, s16, 160")
        A(f"v_add_u32 v{vT+1}, s18, v{vT+1}")
        A(f"v_lshlrev_b32 v{vT+1}, 12, v{vT+1}")
        A(f"v_lshrrev_b32 v{vT+2}, 1, v{vT}")
        A(f"v_lshlrev_b32 v{vT+2}, 5, v{vT+2}")
        A(f"v_bfe_u32 v{vT+3}, v0, 4, 2")
        A(f"v_lshl_add_u32 v{vT+2}, v{vT+3}, 2, v{vT+2}")
        A("s_lshl_b32 s18, s17, 6")
        A(f"v_add_u32 v{vT+2}, s18, v{vT+2}")
        A(f"v_lshl_add_u32 v{vT+1}, v{vT+2}, 1, v{vT+1}")
        for m in range(MT):
            for n in range(NT):
                a = acc0 + (m*NT+n)*4
                A(f"v_cvt_pk_bf16_f32 v{a}, v{a}, v{a+1}")
                A(f"v_cvt_pk_bf16_f32 v{a+1}, v{a+2}, v{a+3}")
                A(f"s_mov_b32 s18, {n*16*4096 + m*32}")
                A(f"buffer_store_dwordx2 v[{a}:{a+1}], v{vT+1}, s[28:31], s18 offen")
    return gen_gemm("gemm1_kernel", 64, 160, 10, 256, setup, epilogue, 1280, 1280)

def gen_gemm2():
    def setup():
        A("s_load_dwordx2 s[4:5], s[0:1], 96")
        A("s_load_dwordx4 s[24:27], s[0:1], 8")
        A("s_and_b32 s16, s2, 3")
        A("s_bfe_u32 s17, s2, 0x20002")
        A("s_lshr_b32 s19, s2, 4")
        A("s_waitcnt lgkmcnt(0)")
        A("s_lshr_b32 s18, s16, 1")
        A("s_mul_i32 s18, s18, 640")
        A("s_mul_i32 s20, s17, 160")
        A("s_add_u32 s18, s18, s20")
        A("s_lshl_b32 s18, s18, 12")
        A("s_and_b32 s20, s16, 1")
        A("s_lshl_b32 s21, s20, 11")
        A("s_add_u32 s18, s18, s21")
        A(f"s_add_u32 s20, s18, {WS_ABT}")
        A("s_add_u32 s8, s4, s20")
        A("s_addc_u32 s9, s5, 0")
        A(f"s_sub_u32 s10, {1280*2048*2}, s18")
        A("s_mov_b32 s11, 0x00020000")
        A("s_cmp_lt_u32 s16, 2")
        A("s_cselect_b32 s12, s24, s26")
        A("s_cselect_b32 s13, s25, s27")
        A("s_lshl_b32 s18, s19, 19")
        A("s_add_u32 s18, s18, s21")
        A("s_add_u32 s12, s12, s18")
        A("s_addc_u32 s13, s13, 0")
        A(f"s_sub_u32 s14, {S*S*2}, s18")
        A("s_mov_b32 s15, 0x00020000")
        srd(28, 4, 4*S*D*4, WS_P)
    def epilogue(MT, NT, acc0, vT):
        A(f"v_lshrrev_b32 v{vT}, 6, v0")
        A(f"v_and_b32 v{vT+1}, 15, v0")
        A(f"v_and_b32 v{vT+2}, 1, v{vT}")
        A(f"v_lshl_add_u32 v{vT+1}, v{vT+2}, 6, v{vT+1}")
        A("s_lshl_b32 s18, s19, 7")
        A("s_lshl_b32 s20, s16, 11")
        A("s_add_u32 s18, s18, s20")
        A(f"v_add_u32 v{vT+1}, s18, v{vT+1}")
        A(f"v_mul_u32_u24 v{vT+1}, 2560, v{vT+1}")
        A(f"v_lshrrev_b32 v{vT+2}, 1, v{vT}")
        A(f"v_mul_u32_u24 v{vT+2}, 80, v{vT+2}")
        A(f"v_bfe_u32 v{vT+3}, v0, 4, 2")
        A(f"v_lshl_add_u32 v{vT+2}, v{vT+3}, 2, v{vT+2}")
        A("s_mul_i32 s18, s17, 160")
        A(f"v_add_u32 v{vT+2}, s18, v{vT+2}")
        A(f"v_lshl_add_u32 v{vT+1}, v{vT+2}, 2, v{vT+1}")
        for m in range(MT):
            for n in range(NT):
                a = acc0 + (m*NT+n)*4
                A(f"s_mov_b32 s18, {n*16*2560 + m*64}")
                A(f"buffer_store_dwordx4 v[{a}:{a+3}], v{vT+1}, s[28:31], s18 offen")
    return gen_gemm("gemm2_kernel", 160, 128, 16, 256, setup, epilogue, 4096, 4096)

def gen_k3():
    name = "ln2_kernel"
    kstart(name)
    A("s_cmp_ge_u32 s2, 512")
    A("s_cbranch_scc1 L_k3_end")
    A("s_load_dwordx2 s[4:5], s[0:1], 0")
    A("s_load_dwordx2 s[6:7], s[0:1], 96")
    A("s_load_dwordx2 s[40:41], s[0:1], 48")
    A("s_load_dwordx2 s[42:43], s[0:1], 80")
    A("v_lshrrev_b32 v1, 6, v0")
    A("v_and_b32 v2, 63, v0")
    A("s_lshl_b32 s3, s2, 2")
    A("v_add_u32 v1, s3, v1")
    A("v_mul_u32_u24 v3, 1280, v1")
    A("v_lshl_add_u32 v3, v2, 2, v3")
    A("v_lshlrev_b32 v4, 1, v3")
    A("v_lshlrev_b32 v5, 2, v2")
    A("s_waitcnt lgkmcnt(0)")
    srd(8, 4, S*D*2)
    srd(12, 6, 4*S*D*4, WS_P)
    srd(16, 40, D*2)
    srd(44, 42, S*D*2)
    srd(48, 6, S*D*2, WS_H)
    srd(52, 6, S*D*2, WS_LN2)
    srd(56, 6, S*4, WS_SC)
    for j in range(5):
        A(f"buffer_load_dword v{10+j}, v3, s[8:11], 0 offen offset:{j*256}")
    for c in range(4):
        A(f"s_mov_b32 s3, {c*S*D*4}")
        for j in range(5):
            A(f"buffer_load_dwordx2 v[{20+(c*5+j)*2}:{21+(c*5+j)*2}], v4, s[12:15], s3 offen offset:{j*512}")
    for j in range(5):
        A(f"buffer_load_dword v{60+j}, v5, s[16:19], 0 offen offset:{j*256}")
    A("s_waitcnt vmcnt(0)")
    for j in range(5):
        for q in range(2):
            p0, p1, p2, p3 = [20+(c*5+j)*2+q for c in range(4)]
            A(f"v_add_f32 v6, v{p0}, v{p1}")
            bf16r(6, 6)
            A(f"v_add_f32 v7, v{p2}, v{p3}")
            bf16r(7, 7)
            A("v_sub_f32 v6, v6, v7")
            bf16r(6, 6)
            if q == 0:
                A(f"v_lshlrev_b32 v7, 16, v{10+j}")
            else:
                A(f"v_and_b32 v7, 0xffff0000, v{10+j}")
            A("v_add_f32 v6, v7, v6")
            bf16r(70+2*j+q, 6)
    ln_core(70, 80, 90, 20)
    for j in range(5):
        A(f"v_lshlrev_b32 v6, 16, v{60+j}")
        A(f"v_and_b32 v7, 0xffff0000, v{60+j}")
        if j == 0:
            A("v_mul_f32 v8, v6, v80")
        else:
            A(f"v_fmac_f32 v8, v6, v{80+2*j}")
        A(f"v_fmac_f32 v8, v7, v{81+2*j}")
    wave_reduce_add([8], 20)
    bf16r(8, 8)
    A("v_lshlrev_b32 v9, 2, v1")
    A("v_cmp_eq_u32 vcc, 0, v2")
    A("s_and_saveexec_b64 s[60:61], vcc")
    A("buffer_store_dword v8, v9, s[56:59], 0 offen")
    A("s_mov_b64 exec, s[60:61]")
    for j in range(5):
        A(f"v_cvt_pk_bf16_f32 v6, v{70+2*j}, v{71+2*j}")
        A(f"buffer_store_dword v6, v3, s[48:51], 0 offen offset:{j*256}")
        A(f"v_cvt_pk_bf16_f32 v7, v{80+2*j}, v{81+2*j}")
        A(f"buffer_store_dword v7, v3, s[52:55], 0 offen offset:{j*256}")
        A(f"v_add_f32 v8, v{70+2*j}, v{80+2*j}")
        A(f"v_add_f32 v9, v{71+2*j}, v{81+2*j}")
        A(f"v_cvt_pk_bf16_f32 v8, v8, v9")
        A(f"buffer_store_dword v8, v3, s[44:47], 0 offen offset:{j*256}")
    L("L_k3_end")
    A("s_endpgm")
    kdesc(name, 96)

def top8(sc_srd, lds_base, sidx):
    A("v_lshlrev_b32 v1, 5, v0")
    A(f"buffer_load_dwordx4 v[4:7], v1, s[{sc_srd}:{sc_srd+3}], 0 offen")
    A(f"buffer_load_dwordx4 v[8:11], v1, s[{sc_srd}:{sc_srd+3}], 0 offen offset:16")
    A("v_lshlrev_b32 v2, 3, v0")
    A("v_sub_u32 v2, 2047, v2")
    A("v_lshrrev_b32 v3, 6, v0")
    A(f"v_lshlrev_b32 v3, 2, v3")
    A(f"v_add_u32 v3, {lds_base}, v3")
    A(f"v_mov_b32 v13, {lds_base}")
    A("s_waitcnt vmcnt(0)")
    for i in range(8):
        A(f"v_ashrrev_i32 v12, 31, v{4+i}")
        A(f"v_or_b32 v12, 0x80000000, v12")
        A(f"v_xor_b32 v{4+i}, v{4+i}, v12")
        A(f"v_and_b32 v{4+i}, 0xffff0000, v{4+i}")
        A(f"v_subrev_u32 v12, {i}, v2")
        A(f"v_or_b32 v{4+i}, v{4+i}, v12")
    for r in range(8):
        A("v_max3_u32 v12, v4, v5, v6")
        A("v_max3_u32 v12, v12, v7, v8")
        A("v_max3_u32 v12, v12, v9, v10")
        A("v_max_u32 v12, v12, v11")
        A("s_nop 1")
        for mod in ("quad_perm:[1,0,3,2]", "quad_perm:[2,3,0,1]", "row_half_mirror", "row_mirror"):
            A(f"v_max_u32_dpp v12, v12, v12 {mod} row_mask:0xf bank_mask:0xf")
            A("s_nop 1")
        for j in range(4):
            A(f"v_readlane_b32 s{60+j}, v12, {16*j}")
        A("s_max_u32 s60, s60, s61")
        A("s_max_u32 s62, s62, s63")
        A("s_max_u32 s60, s60, s62")
        A("v_mov_b32 v12, s60")
        A(f"ds_write_b32 v3, v12 offset:{(r&1)*16}")
        A("s_waitcnt lgkmcnt(0)")
        A("s_barrier")
        A(f"ds_read_b128 v[16:19], v13 offset:{(r&1)*16}")
        A("s_waitcnt lgkmcnt(0)")
        A("v_max3_u32 v12, v16, v17, v18")
        A("v_max_u32 v12, v12, v19")
        A("s_nop 0")
        A("v_readfirstlane_b32 s60, v12")
        A("s_and_b32 s61, s60, 0x7ff")
        A(f"s_sub_u32 s{sidx+r}, 2047, s61")
        for i in range(8):
            A(f"v_cmp_ne_u32 vcc, s60, v{4+i}")
            A("s_nop 1")
            A(f"v_cndmask_b32 v{4+i}, 0, v{4+i}, vcc")

def gen_k4():
    name = "ffn1_kernel"
    kstart(name)
    A("s_cmp_ge_u32 s2, 48")
    A("s_cbranch_scc1 L_k4_end")
    A("s_load_dwordx2 s[6:7], s[0:1], 96")
    A("s_load_dwordx4 s[40:43], s[0:1], 56")
    A("s_waitcnt lgkmcnt(0)")
    srd(8, 6, S*4, WS_SC)
    srd(12, 6, S*D*2, WS_LN2)
    srd(16, 40, D*F*2)
    srd(20, 42, D*F*2)
    srd(24, 6, 8*F*4, WS_ACT)
    srd(28, 6, 32, WS_IDX)
    XB = 64
    RB = XB + 20480
    top8(8, 0, 32)
    A("s_cmp_lg_u32 s2, 0")
    A("s_cbranch_scc1 L_k4_noidx")
    for t in range(8):
        A(f"v_mov_b32 v1, s{32+t}")
        A(f"v_mov_b32 v2, {4*t}")
        A("v_cmp_eq_u32 vcc, 0, v0")
        A("s_and_saveexec_b64 s[60:61], vcc")
        A("buffer_store_dword v1, v2, s[28:31], 0 offen")
        A("s_mov_b64 exec, s[60:61]")
    L("L_k4_noidx")
    A("v_cmp_gt_u32 vcc, 160, v0")
    A("s_and_saveexec_b64 s[60:61], vcc")
    A("v_lshlrev_b32 v1, 3, v0")
    A("v_lshlrev_b32 v2, 7, v0")
    for t in range(8):
        A(f"s_mul_i32 s3, s{32+t}, 1280")
        A(f"buffer_load_dwordx2 v[{4+2*t}:{5+2*t}], v1, s[12:15], s3 offen")
    A("s_waitcnt vmcnt(0)")
    for t in range(8):
        A(f"v_lshlrev_b32 v20, 16, v{4+2*t}")
        A(f"v_and_b32 v21, 0xffff0000, v{4+2*t}")
        A(f"v_lshlrev_b32 v22, 16, v{5+2*t}")
        A(f"v_and_b32 v23, 0xffff0000, v{5+2*t}")
        for q in range(4):
            A(f"ds_write_b32 v2, v{20+q} offset:{XB + q*32 + t*4}")
    A("s_mov_b64 exec, s[60:61]")
    A("v_lshrrev_b32 v1, 4, v0")
    A("v_and_b32 v2, 15, v0")
    A("v_mul_u32_u24 v3, 3072, v1")
    A("v_lshl_add_u32 v3, v2, 2, v3")
    A("s_lshl_b32 s3, s2, 6")
    A("v_add_u32 v3, s3, v3")
    A("v_lshlrev_b32 v4, 5, v1")
    W0 = 40
    for it in range(40):
        A(f"s_mov_b32 s3, {it*16*3072}")
        A(f"buffer_load_dword v{W0+2*it}, v3, s[16:19], s3 offen")
        A(f"buffer_load_dword v{W0+2*it+1}, v3, s[20:23], s3 offen")
    A("s_waitcnt lgkmcnt(0)")
    A("s_barrier")
    ACC = 8
    for i in range(32):
        A(f"v_mov_b32 v{ACC+i}, 0")
    XR = 120
    for it in range(40):
        A(f"ds_read_b128 v[{XR}:{XR+3}], v4 offset:{XB + it*16*32}")
        A(f"ds_read_b128 v[{XR+4}:{XR+7}], v4 offset:{XB + it*16*32 + 16}")
        A(f"s_waitcnt vmcnt({min(63, 78-2*it)}) lgkmcnt(0)")
        for mat in range(2):
            w = W0 + 2*it + mat
            A(f"v_lshlrev_b32 v5, 16, v{w}")
            A(f"v_and_b32 v6, 0xffff0000, v{w}")
            for t in range(8):
                A(f"v_fmac_f32 v{ACC+(mat*2+0)*8+t}, v5, v{XR+t}")
                A(f"v_fmac_f32 v{ACC+(mat*2+1)*8+t}, v6, v{XR+t}")
    A("v_lshlrev_b32 v5, 11, v1")
    A("v_lshl_add_u32 v5, v2, 2, v5")
    for i in range(32):
        A(f"ds_write_b32 v5, v{ACC+i} offset:{RB + i*64}")
    A("s_waitcnt lgkmcnt(0)")
    A("s_barrier")
    A("v_lshrrev_b32 v1, 5, v0")
    A("v_and_b32 v2, 31, v0")
    A("v_and_b32 v3, 1, v2")
    A("v_lshl_add_u32 v3, v3, 3, v1")
    A("v_lshlrev_b32 v3, 6, v3")
    A("v_lshrrev_b32 v4, 1, v2")
    A("v_lshl_add_u32 v3, v4, 2, v3")
    for kq in range(16):
        A(f"ds_read_b32 v{8+kq}, v3 offset:{RB + kq*2048}")
        A(f"ds_read_b32 v{24+kq}, v3 offset:{RB + kq*2048 + 16*64}")
    A("s_waitcnt lgkmcnt(0)")
    for kq in range(1, 16):
        A(f"v_add_f32 v8, v8, v{8+kq}")
        A(f"v_add_f32 v24, v24, v{24+kq}")
    bf16r(8, 8)
    bf16r(24, 24)
    A("v_mul_f32 v9, 0xbfb8aa3b, v8")
    A("v_exp_f32 v9, v9")
    A("s_nop 0")
    A("v_add_f32 v9, 1.0, v9")
    A("v_rcp_f32 v9, v9")
    A("s_nop 0")
    A("v_mul_f32 v9, v8, v9")
    bf16r(9, 9)
    A("v_mul_f32 v9, v9, v24")
    bf16r(9, 9)
    A("v_mul_u32_u24 v4, 1536, v1")
    A("v_add_u32 v4, v4, v2")
    A("s_lshl_b32 s3, s2, 5")
    A("v_add_u32 v4, s3, v4")
    A("v_lshlrev_b32 v4, 2, v4")
    A("buffer_store_dword v9, v4, s[24:27], 0 offen")
    L("L_k4_end")
    A("s_endpgm")
    kdesc(name, 128)
    return RB + 32768

def gen_k5():
    name = "ffn2_kernel"
    kstart(name)
    A("s_cmp_ge_u32 s2, 20")
    A("s_cbranch_scc1 L_k5_end")
    A("s_load_dwordx2 s[6:7], s[0:1], 96")
    A("s_load_dwordx4 s[40:43], s[0:1], 72")
    A("s_waitcnt lgkmcnt(0)")
    srd(8, 6, S*4, WS_SC)
    srd(12, 6, S*D*2, WS_LN2)
    srd(16, 40, D*F*2)
    srd(20, 42, S*D*2)
    srd(24, 6, 8*F*4, WS_ACT)
    srd(28, 6, 32, WS_IDX)
    srd(44, 6, S*D*2, WS_H)
    XB = 0
    RB = 49152
    A("v_lshlrev_b32 v1, 2, v0")
    A("v_lshlrev_b32 v2, 5, v0")
    for i in range(6):
        for t in range(8):
            A(f"buffer_load_dword v{8+i*8+t}, v1, s[24:27], 0 offen offset:{i*1024}" if t == 0 and False else
              f"s_mov_b32 s3, {t*F*4 + i*1024}")
            A(f"buffer_load_dword v{8+i*8+t}, v1, s[24:27], s3 offen")
    A("s_waitcnt vmcnt(0)")
    for i in range(6):
        for t in range(8):
            A(f"ds_write_b32 v2, v{8+i*8+t} offset:{XB + i*8192 + t*4}")
    A("v_lshrrev_b32 v1, 4, v0")
    A("v_and_b32 v2, 15, v0")
    A("v_mul_u32_u24 v3, 1280, v1")
    A("v_lshl_add_u32 v3, v2, 2, v3")
    A("s_lshl_b32 s3, s2, 6")
    A("v_add_u32 v3, s3, v3")
    A("v_lshlrev_b32 v4, 5, v1")
    W0 = 40
    for it in range(96):
        A(f"s_mov_b32 s3, {it*16*1280}")
        A(f"buffer_load_dword v{W0+it}, v3, s[16:19], s3 offen")
    A("s_waitcnt lgkmcnt(0)")
    A("s_barrier")
    ACC = 8
    for i in range(16):
        A(f"v_mov_b32 v{ACC+i}, 0")
    XR = 140
    for it in range(96):
        A(f"ds_read_b128 v[{XR}:{XR+3}], v4 offset:{XB + it*16*32}")
        A(f"ds_read_b128 v[{XR+4}:{XR+7}], v4 offset:{XB + it*16*32 + 16}")
        A(f"s_waitcnt vmcnt({min(63, 95-it)}) lgkmcnt(0)")
        w = W0 + it
        A(f"v_lshlrev_b32 v5, 16, v{w}")
        A(f"v_and_b32 v6, 0xffff0000, v{w}")
        for t in range(8):
            A(f"v_fmac_f32 v{ACC+t}, v5, v{XR+t}")
            A(f"v_fmac_f32 v{ACC+8+t}, v6, v{XR+t}")
    A("v_lshlrev_b32 v5, 10, v1")
    A("v_lshl_add_u32 v5, v2, 2, v5")
    for i in range(16):
        A(f"ds_write_b32 v5, v{ACC+i} offset:{RB + i*64}")
    A("s_waitcnt lgkmcnt(0)")
    A("s_barrier")
    A("v_lshrrev_b32 v1, 5, v0")
    A("v_and_b32 v2, 31, v0")
    A("v_and_b32 v3, 1, v2")
    A("v_lshl_add_u32 v3, v3, 3, v1")
    A("v_lshlrev_b32 v3, 6, v3")
    A("v_lshrrev_b32 v4, 1, v2")
    A("v_lshl_add_u32 v3, v4, 2, v3")
    for kq in range(16):
        A(f"ds_read_b32 v{8+kq}, v3 offset:{RB + kq*1024}")
    A("v_lshlrev_b32 v4, 2, v1")
    A("buffer_load_dword v5, v4, s[28:31], 0 offen")
    A("s_waitcnt vmcnt(0) lgkmcnt(0)")
    for kq in range(1, 16):
        A(f"v_add_f32 v8, v8, v{8+kq}")
    bf16r(8, 8)
    A("v_lshlrev_b32 v6, 2, v5")
    A("buffer_load_dword v9, v6, s[8:11], 0 offen")
    A("v_mul_u32_u24 v6, 1280, v5")
    A("s_lshl_b32 s3, s2, 6")
    A("v_lshl_add_u32 v7, v2, 1, s3")
    A("v_add_u32 v6, v6, v7")
    A("buffer_load_ushort v10, v6, s[12:15], 0 offen")
    A("buffer_load_ushort v11, v6, s[44:47], 0 offen")
    A("s_waitcnt vmcnt(0)")
    A("v_mul_f32 v9, 0xbfb8aa3b, v9")
    A("v_exp_f32 v9, v9")
    A("s_nop 0")
    A("v_add_f32 v9, 1.0, v9")
    A("v_rcp_f32 v9, v9")
    A("s_nop 0")
    bf16r(9, 9)
    A("v_mul_f32 v8, v8, v9")
    bf16r(8, 8)
    A("v_lshlrev_b32 v10, 16, v10")
    A("v_lshlrev_b32 v11, 16, v11")
    A("v_add_f32 v8, v10, v8")
    bf16r(8, 8)
    A("v_add_f32 v8, v11, v8")
    A("v_cvt_pk_bf16_f32 v8, v8, v8")
    A("buffer_store_short v8, v6, s[20:23], 0 offen")
    L("L_k5_end")
    A("s_endpgm")
    kdesc(name, 152)
    return RB + 16384

hdr = open('sequential_preLN__spectral_fnet__moe_arch_mod__prompt.s.ref').read().split('\n')
hdr = [l for l in hdr if l.startswith(';') and '@launch' not in l]
gen_ln1()
lds1 = gen_gemm1()
lds2 = gen_gemm2()
gen_k3()
lds4 = gen_k4()
lds5 = gen_k5()
launch = [
    "; @launch kernel=ln1_kernel grid=(512,1,1) block=(256,1,1) lds=0",
    f"; @launch kernel=gemm1_kernel grid=(256,1,1) block=(256,1,1) lds={lds1}",
    f"; @launch kernel=gemm2_kernel grid=(256,1,1) block=(256,1,1) lds={lds2}",
    "; @launch kernel=ln2_kernel grid=(512,1,1) block=(256,1,1) lds=0",
    f"; @launch kernel=ffn1_kernel grid=(48,1,1) block=(256,1,1) lds={lds4}",
    f"; @launch kernel=ffn2_kernel grid=(20,1,1) block=(256,1,1) lds={lds5}",
]
txt = "\n".join(hdr + launch + ['.amdgcn_target "amdgcn-amd-amdhsa--gfx950"', ".text"] + out +
                ['.section .rodata,"a"'] + descs) + "\n"
open(sys.argv[1] if len(sys.argv) > 1 else 'sequential_preLN__spectral_fnet__moe_arch_mod__prompt.s', 'w').write(txt)
print("ok", len(txt))
```

```python
import sys, os
EXP = os.environ.get('EXP','')

S, D, F = 2048, 640, 1536
WS_LN1 = 0
WS_ABT = 4 << 20
WS_P   = 16 << 20
WS_H   = 40 << 20
WS_LN2 = 44 << 20
WS_SC  = 48 << 20
WS_ACT = (48 << 20) + (64 << 10)
WS_IDX = (48 << 20) + (128 << 10)

out = []
import re as _re
def A(s):
    if s.startswith("buffer_"):
        m = _re.search(r"offset:(\d+)", s)
        assert not m or int(m.group(1)) < 4096, s
    out.append("    " + s)
def L(s):
    out.append(s + ":")
def C(s):
    out.append("    ; " + s)

def srd(dst, ptr, size, off=0):
    if off:
        A(f"s_add_u32 s{dst}, s{ptr}, {off}")
        A(f"s_addc_u32 s{dst+1}, s{ptr+1}, 0")
    else:
        A(f"s_mov_b32 s{dst}, s{ptr}")
        A(f"s_mov_b32 s{dst+1}, s{ptr+1}")
    A(f"s_mov_b32 s{dst+2}, {size}")
    A(f"s_mov_b32 s{dst+3}, 0x00020000")

def kstart(name):
    out.append(f".globl {name}")
    out.append(".p2align 8")
    out.append(f".type {name},@function")
    L(name)

descs = []
def kdesc(name, vgpr, sgpr=102):
    acc = (vgpr + 3) // 4 * 4
    descs.append(f""".p2align 6
.amdhsa_kernel {name}
  .amdhsa_next_free_vgpr {vgpr}
  .amdhsa_next_free_sgpr {sgpr}
  .amdhsa_accum_offset {acc}
  .amdhsa_group_segment_fixed_size 0
  .amdhsa_kernarg_size 104
  .amdhsa_user_sgpr_count 2
  .amdhsa_user_sgpr_kernarg_segment_ptr 1
  .amdhsa_system_sgpr_workgroup_id_x 1
.end_amdhsa_kernel""")

def wave_reduce_add(regs, stmp):
    A("s_nop 1")
    for mod in ("quad_perm:[1,0,3,2]", "quad_perm:[2,3,0,1]", "row_half_mirror", "row_mirror"):
        for r in regs:
            A(f"v_add_f32_dpp v{r}, v{r}, v{r} {mod} row_mask:0xf bank_mask:0xf")
        if len(regs) < 2:
            A("s_nop 1")
        else:
            A("s_nop 0")
    for i, r in enumerate(regs):
        for j in range(4):
            A(f"v_readlane_b32 s{stmp+4*i+j}, v{r}, {16*j}")
    A("s_nop 1")
    for i, r in enumerate(regs):
        A(f"v_mov_b32 v{r}, s{stmp+4*i}")
        for j in range(1, 4):
            A(f"v_add_f32 v{r}, s{stmp+4*i+j}, v{r}")

def bf16r(dst, src, tmp=None):
    A(f"v_cvt_pk_bf16_f32 v{dst}, v{src}, v{src}")
    A(f"v_lshlrev_b32 v{dst}, 16, v{dst}")

def ln_core(X, O, T, stmp):
    A(f"v_add_f32 v{T}, v{X}, v{X+1}")
    for j in range(2, 10):
        A(f"v_add_f32 v{T}, v{T}, v{X+j}")
    wave_reduce_add([T], stmp)
    A(f"v_mul_f32 v{T}, {1.0/640.0!r}, v{T}")
    A(f"v_sub_f32 v{T+1}, v{X}, v{T}")
    A(f"v_mul_f32 v{T+2}, v{T+1}, v{T+1}")
    for j in range(1, 10):
        A(f"v_sub_f32 v{T+1}, v{X+j}, v{T}")
        A(f"v_fmac_f32 v{T+2}, v{T+1}, v{T+1}")
    wave_reduce_add([T+2], stmp)
    A(f"v_mul_f32 v{T+2}, {1.0/640.0!r}, v{T+2}")
    bf16r(T+2, T+2)
    A(f"v_add_f32 v{T+2}, 0x3727c5ac, v{T+2}")
    bf16r(T+2, T+2)
    A(f"v_sqrt_f32 v{T+2}, v{T+2}")
    A("s_nop 0")
    bf16r(T+2, T+2)
    A(f"v_rcp_f32 v{T+2}, v{T+2}")
    bf16r(T, T)
    for j in range(10):
        A(f"v_sub_f32 v{T+1}, v{X+j}, v{T}")
        bf16r(T+1, T+1)
        A(f"v_mul_f32 v{T+1}, v{T+1}, v{T+2}")
        bf16r(O+j, T+1)

def gen_ln1():
    name = "ln1_kernel"
    kstart(name)
    A("s_cmp_ge_u32 s2, 512")
    A("s_cbranch_scc1 L_ln1_end")
    A("s_load_dwordx2 s[4:5], s[0:1], 0")
    A("s_load_dwordx2 s[6:7], s[0:1], 96")
    A("v_lshrrev_b32 v1, 6, v0")
    A("v_and_b32 v2, 63, v0")
    A("s_lshl_b32 s3, s2, 2")
    A("v_add_u32 v1, s3, v1")
    A("v_mul_u32_u24 v1, 1280, v1")
    A("v_lshl_add_u32 v1, v2, 2, v1")
    A("s_waitcnt lgkmcnt(0)")
    srd(8, 4, S*D*2)
    srd(12, 6, S*D*2, WS_LN1)
    for j in range(5):
        A(f"buffer_load_dword v{10+j}, v1, s[8:11], 0 offen offset:{j*256}")
    A("s_waitcnt vmcnt(0)")
    for j in range(5):
        A(f"v_lshlrev_b32 v{20+2*j}, 16, v{10+j}")
        A(f"v_and_b32 v{21+2*j}, 0xffff0000, v{10+j}")
    ln_core(20, 30, 40, 20)
    for j in range(5):
        A(f"v_cvt_pk_bf16_f32 v{10+j}, v{30+2*j}, v{31+2*j}")
    for j in range(5):
        A(f"buffer_store_dword v{10+j}, v1, s[12:15], 0 offen offset:{j*256}")
    L("L_ln1_end")
    A("s_endpgm")
    kdesc(name, 48)

def gen_gemm(name, BM, BN, KIT, nwg, setup, epilogue, strideA, strideB, NST=4):
    MT, NT = BM // 32, BN // 32
    CA, CB = BM // 8, BN // 8
    NA, NB = CA // 4, CB // 4
    NL = NA + NB
    STG = (BM + BN) * 128
    vOA, vOB = 1, 2
    vR = 3
    vT = 11
    acc0 = 16
    fA = acc0 + MT * NT * 4
    fB = fA + 2 * MT * 4
    nv = fB + 2 * NT * 4
    kstart(name)
    A(f"s_cmp_ge_u32 s2, {nwg}")
    A(f"s_cbranch_scc1 L_{name}_end")
    if EXP == 'empty':
        A(f"s_branch L_{name}_end")
    setup()
    A(f"v_lshrrev_b32 v{vT}, 6, v0")
    A("s_nop 0")
    A(f"v_readfirstlane_b32 s32, v{vT}")
    A("s_lshl_b32 s33, s32, 10")
    A(f"s_mul_i32 s34, s32, {8*strideA}")
    A(f"s_mul_i32 s35, s32, {8*strideB}")
    A(f"v_bfe_u32 v{vT+1}, v0, 3, 3")
    A(f"v_and_b32 v{vT+2}, 7, v0")
    A(f"v_xor_b32 v{vT+2}, v{vT+2}, v{vT+1}")
    A(f"v_lshlrev_b32 v{vT+2}, 4, v{vT+2}")
    A(f"s_mov_b32 s20, {strideA}")
    A(f"s_mov_b32 s21, {strideB}")
    A(f"v_mul_lo_u32 v{vOA}, v{vT+1}, s20")
    A(f"v_add_u32 v{vOA}, v{vOA}, v{vT+2}")
    A(f"v_mul_lo_u32 v{vOB}, v{vT+1}, s21")
    A(f"v_add_u32 v{vOB}, v{vOB}, v{vT+2}")
    A(f"v_and_b32 v{vT+1}, 15, v0")
    A(f"v_bfe_u32 v{vT+2}, v0, 4, 2")
    A(f"v_and_b32 v{vT+3}, 7, v0")
    A(f"v_xor_b32 v{vT+2}, v{vT+2}, v{vT+3}")
    A(f"v_lshlrev_b32 v{vT+2}, 4, v{vT+2}")
    A(f"v_lshrrev_b32 v{vT+3}, 1, v{vT}")
    A(f"v_mul_u32_u24 v{vT+3}, {BM//2}, v{vT+3}")
    A(f"v_add_u32 v{vT+3}, v{vT+3}, v{vT+1}")
    A(f"v_lshl_add_u32 v{vR}, v{vT+3}, 7, v{vT+2}")
    A(f"v_xor_b32 v{vR+1}, 64, v{vR}")
    A(f"v_and_b32 v{vT+3}, 1, v{vT}")
    A(f"v_mul_u32_u24 v{vT+3}, {BN//2}, v{vT+3}")
    A(f"v_add_u32 v{vT+3}, v{vT+3}, v{vT+1}")
    A(f"v_lshl_add_u32 v{vR+2}, v{vT+3}, 7, v{vT+2}")
    A(f"v_add_u32 v{vR+2}, {BM*128}, v{vR+2}")
    A(f"v_xor_b32 v{vR+3}, 64, v{vR+2}")
    for i in range(MT * NT * 4):
        A(f"v_mov_b32 v{acc0+i}, 0")
    def gload():
        for i in range(NA):
            A(f"s_add_u32 m0, s36, {i*4096}")
            A(f"s_add_u32 s22, s40, {i*32*strideA}")
            A(f"buffer_load_dwordx4 v{vOA}, s[8:11], s22 offen lds" if 'vreg' not in EXP else f"buffer_load_dwordx4 v[{200+4*i}:{203+4*i}], v{vOA}, s[8:11], s22 offen")
        for i in range(NB):
            A(f"s_add_u32 m0, s36, {BM*128 + i*4096}")
            A(f"s_add_u32 s22, s41, {i*32*strideB}")
            A(f"buffer_load_dwordx4 v{vOB}, s[12:15], s22 offen lds" if 'vreg' not in EXP else f"buffer_load_dwordx4 v[{220+4*i}:{223+4*i}], v{vOB}, s[12:15], s22 offen")
        A("s_add_u32 s38, s38, 128")
        A(f"s_cmp_ge_u32 s38, {KIT*128}")
        A("s_cselect_b32 s38, 0, s38")
        A("s_add_u32 s40, s34, s38")
        A("s_add_u32 s41, s35, s38")
        A(f"s_add_u32 s36, s36, {STG}")
        A(f"s_cmp_ge_u32 s36, {NST*STG}")
        A(f"s_cselect_b32 s22, {NST*STG}, 0")
        A("s_sub_u32 s36, s36, s22")
    def compute():
        for i in range(4):
            A(f"v_add_u32 v{vR+4+i}, s37, v{vR+i}")
        for ks in range(2):
            for m in range(MT):
                A(f"ds_read_b128 v[{fA+(ks*MT+m)*4}:{fA+(ks*MT+m)*4+3}], v{vR+4+ks} offset:{m*2048}")
            for n in range(NT):
                A(f"ds_read_b128 v[{fB+(ks*NT+n)*4}:{fB+(ks*NT+n)*4+3}], v{vR+4+2+ks} offset:{n*2048}")
        A(f"s_add_u32 s37, s37, {STG}")
        A(f"s_cmp_ge_u32 s37, {NST*STG}")
        A(f"s_cselect_b32 s22, {NST*STG}, 0")
        A("s_sub_u32 s37, s37, s22")
        for ks in range(2):
            A(f"s_waitcnt lgkmcnt({MT+NT if ks == 0 else 0})")
            for m in range(MT):
                for n in range(NT):
                    a = acc0 + (m*NT+n)*4
                    A(f"v_mfma_f32_16x16x32_bf16 v[{a}:{a+3}], v[{fA+(ks*MT+m)*4}:{fA+(ks*MT+m)*4+3}], v[{fB+(ks*NT+n)*4}:{fB+(ks*NT+n)*4+3}], v[{a}:{a+3}]")
    A("s_mov_b32 s36, s33")
    A("s_mov_b32 s37, 0")
    A("s_mul_i32 s38, s2, 7")
    A("s_lshr_b32 s22, s2, 4")
    A("s_add_u32 s38, s38, s22")
    A(f"s_mul_hi_u32 s22, s38, {(2**32 + KIT - 1)//KIT}")
    A(f"s_mul_i32 s22, s22, {KIT}")
    A("s_sub_u32 s38, s38, s22")
    A("s_lshl_b32 s38, s38, 7")
    A("s_add_u32 s40, s34, s38")
    A("s_add_u32 s41, s35, s38")
    A("s_mov_b32 s39, 0")
    L(f"L_{name}_pro")
    gload()
    A("s_add_u32 s39, s39, 1")
    A(f"s_cmp_lt_u32 s39, {NST-1}")
    A(f"s_cbranch_scc1 L_{name}_pro")
    A("s_mov_b32 s39, 0")
    L(f"L_{name}_loop")
    A(f"s_waitcnt vmcnt({(NST-2) * NL})")
    A("s_barrier")
    gload()
    compute()
    A("s_add_u32 s39, s39, 1")
    A(f"s_cmp_lt_u32 s39, {KIT-(NST-1)}")
    A(f"s_cbranch_scc1 L_{name}_loop")
    A("s_waitcnt vmcnt(0)")
    A("s_barrier")
    L(f"L_{name}_tail")
    compute()
    A("s_add_u32 s39, s39, 1")
    A(f"s_cmp_lt_u32 s39, {KIT}")
    A(f"s_cbranch_scc1 L_{name}_tail")
    A("s_nop 7")
    if 'nostore' not in EXP:
        epilogue(MT, NT, acc0, vT)
    L(f"L_{name}_end")
    A("s_endpgm")
    kdesc(name, 256 if 'vreg' in EXP else max(nv, 64))
    return NST * STG

def gen_gemm1():
    def setup():
        A("s_load_dwordx2 s[4:5], s[0:1], 96")
        A("s_load_dwordx4 s[24:27], s[0:1], 24")
        A("s_and_b32 s16, s2, 7")
        A("s_lshr_b32 s17, s2, 3")
        A("s_waitcnt lgkmcnt(0)")
        A("s_mul_i32 s18, s17, 81920")
        A("s_add_u32 s8, s4, s18")
        A("s_addc_u32 s9, s5, 0")
        A(f"s_sub_u32 s10, {S*D*2}, s18")
        A("s_mov_b32 s11, 0x00020000")
        A("s_cmp_lt_u32 s16, 4")
        A("s_cselect_b32 s12, s24, s26")
        A("s_cselect_b32 s13, s25, s27")
        A("s_and_b32 s18, s16, 3")
        A("s_mul_i32 s18, s18, 204800")
        A("s_add_u32 s12, s12, s18")
        A("s_addc_u32 s13, s13, 0")
        A(f"s_sub_u32 s14, {D*D*2}, s18")
        A("s_mov_b32 s15, 0x00020000")
        srd(28, 4, 1280*2048*2, WS_ABT)
    def epilogue(MT, NT, acc0, vT):
        A(f"v_lshrrev_b32 v{vT}, 6, v0")
        A(f"v_and_b32 v{vT+1}, 15, v0")
        A(f"v_and_b32 v{vT+2}, 1, v{vT}")
        A(f"v_mul_u32_u24 v{vT+2}, 80, v{vT+2}")
        A(f"v_add_u32 v{vT+1}, v{vT+1}, v{vT+2}")
        A("s_mul_i32 s18, s16, 160")
        A(f"v_add_u32 v{vT+1}, s18, v{vT+1}")
        A(f"v_lshlrev_b32 v{vT+1}, 12, v{vT+1}")
        A(f"v_lshrrev_b32 v{vT+2}, 1, v{vT}")
        A(f"v_lshlrev_b32 v{vT+2}, 5, v{vT+2}")
        A(f"v_bfe_u32 v{vT+3}, v0, 4, 2")
        A(f"v_lshl_add_u32 v{vT+2}, v{vT+3}, 2, v{vT+2}")
        A("s_lshl_b32 s18, s17, 6")
        A(f"v_add_u32 v{vT+2}, s18, v{vT+2}")
        A(f"v_lshl_add_u32 v{vT+1}, v{vT+2}, 1, v{vT+1}")
        for m in range(MT):
            for n in range(NT):
                a = acc0 + (m*NT+n)*4
                A(f"v_cvt_pk_bf16_f32 v{a}, v{a}, v{a+1}")
                A(f"v_cvt_pk_bf16_f32 v{a+1}, v{a+2}, v{a+3}")
                A(f"s_mov_b32 s18, {n*16*4096 + m*32}")
                A(f"buffer_store_dwordx2 v[{a}:{a+1}], v{vT+1}, s[28:31], s18 offen")
    return gen_gemm("gemm1_kernel", 64, 160, 10, 256, setup, epilogue, 1280, 1280)

def gen_gemm2():
    def setup():
        A("s_load_dwordx2 s[4:5], s[0:1], 96")
        A("s_load_dwordx4 s[24:27], s[0:1], 8")
        A("s_and_b32 s16, s2, 3")
        A("s_bfe_u32 s17, s2, 0x20002")
        A("s_lshr_b32 s19, s2, 4")
        A("s_waitcnt lgkmcnt(0)")
        A("s_lshr_b32 s18, s16, 1")
        A("s_mul_i32 s18, s18, 640")
        A("s_mul_i32 s20, s17, 160")
        A("s_add_u32 s18, s18, s20")
        A("s_lshl_b32 s18, s18, 12")
        A("s_and_b32 s20, s16, 1")
        A("s_lshl_b32 s21, s20, 11")
        A("s_add_u32 s18, s18, s21")
        A(f"s_add_u32 s20, s18, {WS_ABT}")
        A("s_add_u32 s8, s4, s20")
        A("s_addc_u32 s9, s5, 0")
        A(f"s_sub_u32 s10, {1280*2048*2}, s18")
        A("s_mov_b32 s11, 0x00020000")
        A("s_cmp_lt_u32 s16, 2")
        A("s_cselect_b32 s12, s24, s26")
        A("s_cselect_b32 s13, s25, s27")
        A("s_lshl_b32 s18, s19, 19")
        A("s_add_u32 s18, s18, s21")
        A("s_add_u32 s12, s12, s18")
        A("s_addc_u32 s13, s13, 0")
        A(f"s_sub_u32 s14, {S*S*2}, s18")
        A("s_mov_b32 s15, 0x00020000")
        srd(28, 4, 4*S*D*4, WS_P)
    def epilogue(MT, NT, acc0, vT):
        A(f"v_lshrrev_b32 v{vT}, 6, v0")
        A(f"v_and_b32 v{vT+1}, 15, v0")
        A(f"v_and_b32 v{vT+2}, 1, v{vT}")
        A(f"v_lshl_add_u32 v{vT+1}, v{vT+2}, 6, v{vT+1}")
        A("s_lshl_b32 s18, s19, 7")
        A("s_lshl_b32 s20, s16, 11")
        A("s_add_u32 s18, s18, s20")
        A(f"v_add_u32 v{vT+1}, s18, v{vT+1}")
        A(f"v_mul_u32_u24 v{vT+1}, 2560, v{vT+1}")
        A(f"v_lshrrev_b32 v{vT+2}, 1, v{vT}")
        A(f"v_mul_u32_u24 v{vT+2}, 80, v{vT+2}")
        A(f"v_bfe_u32 v{vT+3}, v0, 4, 2")
        A(f"v_lshl_add_u32 v{vT+2}, v{vT+3}, 2, v{vT+2}")
        A("s_mul_i32 s18, s17, 160")
        A(f"v_add_u32 v{vT+2}, s18, v{vT+2}")
        A(f"v_lshl_add_u32 v{vT+1}, v{vT+2}, 2, v{vT+1}")
        for m in range(MT):
            for n in range(NT):
                a = acc0 + (m*NT+n)*4
                A(f"s_mov_b32 s18, {n*16*2560 + m*64}")
                A(f"buffer_store_dwordx4 v[{a}:{a+3}], v{vT+1}, s[28:31], s18 offen")
    return gen_gemm("gemm2_kernel", 160, 128, 16, 256, setup, epilogue, 4096, 4096)

def gen_k3():
    name = "ln2_kernel"
    kstart(name)
    A("s_cmp_ge_u32 s2, 512")
    A("s_cbranch_scc1 L_k3_end")
    A("s_load_dwordx2 s[4:5], s[0:1], 0")
    A("s_load_dwordx2 s[6:7], s[0:1], 96")
    A("s_load_dwordx2 s[40:41], s[0:1], 48")
    A("s_load_dwordx2 s[42:43], s[0:1], 80")
    A("v_lshrrev_b32 v1, 6, v0")
    A("v_and_b32 v2, 63, v0")
    A("s_lshl_b32 s3, s2, 2")
    A("v_add_u32 v1, s3, v1")
    A("v_mul_u32_u24 v3, 1280, v1")
    A("v_lshl_add_u32 v3, v2, 2, v3")
    A("v_lshlrev_b32 v4, 1, v3")
    A("v_lshlrev_b32 v5, 2, v2")
    A("s_waitcnt lgkmcnt(0)")
    srd(8, 4, S*D*2)
    srd(12, 6, 4*S*D*4, WS_P)
    srd(16, 40, D*2)
    srd(44, 42, S*D*2)
    srd(48, 6, S*D*2, WS_H)
    srd(52, 6, S*D*2, WS_LN2)
    srd(56, 6, S*4, WS_SC)
    for j in range(5):
        A(f"buffer_load_dword v{10+j}, v3, s[8:11], 0 offen offset:{j*256}")
    for c in range(4):
        A(f"s_mov_b32 s3, {c*S*D*4}")
        for j in range(5):
            A(f"buffer_load_dwordx2 v[{20+(c*5+j)*2}:{21+(c*5+j)*2}], v4, s[12:15], s3 offen offset:{j*512}")
    for j in range(5):
        A(f"buffer_load_dword v{60+j}, v5, s[16:19], 0 offen offset:{j*256}")
    A("s_waitcnt vmcnt(0)")
    for j in range(5):
        for q in range(2):
            p0, p1, p2, p3 = [20+(c*5+j)*2+q for c in range(4)]
            A(f"v_add_f32 v6, v{p0}, v{p1}")
            bf16r(6, 6)
            A(f"v_add_f32 v7, v{p2}, v{p3}")
            bf16r(7, 7)
            A("v_sub_f32 v6, v6, v7")
            bf16r(6, 6)
            if q == 0:
                A(f"v_lshlrev_b32 v7, 16, v{10+j}")
            else:
                A(f"v_and_b32 v7, 0xffff0000, v{10+j}")
            A("v_add_f32 v6, v7, v6")
            bf16r(70+2*j+q, 6)
    ln_core(70, 80, 90, 20)
    for j in range(5):
        A(f"v_lshlrev_b32 v6, 16, v{60+j}")
        A(f"v_and_b32 v7, 0xffff0000, v{60+j}")
        if j == 0:
            A("v_mul_f32 v8, v6, v80")
        else:
            A(f"v_fmac_f32 v8, v6, v{80+2*j}")
        A(f"v_fmac_f32 v8, v7, v{81+2*j}")
    wave_reduce_add([8], 20)
    bf16r(8, 8)
    A("v_lshlrev_b32 v9, 2, v1")
    A("v_cmp_eq_u32 vcc, 0, v2")
    A("s_and_saveexec_b64 s[60:61], vcc")
    A("buffer_store_dword v8, v9, s[56:59], 0 offen")
    A("s_mov_b64 exec, s[60:61]")
    for j in range(5):
        A(f"v_cvt_pk_bf16_f32 v6, v{70+2*j}, v{71+2*j}")
        A(f"buffer_store_dword v6, v3, s[48:51], 0 offen offset:{j*256}")
        A(f"v_cvt_pk_bf16_f32 v7, v{80+2*j}, v{81+2*j}")
        A(f"buffer_store_dword v7, v3, s[52:55], 0 offen offset:{j*256}")
        A(f"v_add_f32 v8, v{70+2*j}, v{80+2*j}")
        A(f"v_add_f32 v9, v{71+2*j}, v{81+2*j}")
        A(f"v_cvt_pk_bf16_f32 v8, v8, v9")
        A(f"buffer_store_dword v8, v3, s[44:47], 0 offen offset:{j*256}")
    L("L_k3_end")
    A("s_endpgm")
    kdesc(name, 96)

def top8(sc_srd, lds_base, sidx):
    A("v_lshlrev_b32 v1, 5, v0")
    A(f"buffer_load_dwordx4 v[4:7], v1, s[{sc_srd}:{sc_srd+3}], 0 offen")
    A(f"buffer_load_dwordx4 v[8:11], v1, s[{sc_srd}:{sc_srd+3}], 0 offen offset:16")
    A("v_lshlrev_b32 v2, 3, v0")
    A("v_sub_u32 v2, 2047, v2")
    A("v_lshrrev_b32 v3, 6, v0")
    A(f"v_lshlrev_b32 v3, 2, v3")
    A(f"v_add_u32 v3, {lds_base}, v3")
    A(f"v_mov_b32 v13, {lds_base}")
    A("s_waitcnt vmcnt(0)")
    for i in range(8):
        A(f"v_ashrrev_i32 v12, 31, v{4+i}")
        A(f"v_or_b32 v12, 0x80000000, v12")
        A(f"v_xor_b32 v{4+i}, v{4+i}, v12")
        A(f"v_and_b32 v{4+i}, 0xffff0000, v{4+i}")
        A(f"v_subrev_u32 v12, {i}, v2")
        A(f"v_or_b32 v{4+i}, v{4+i}, v12")
    for r in range(8):
        A("v_max3_u32 v12, v4, v5, v6")
        A("v_max3_u32 v12, v12, v7, v8")
        A("v_max3_u32 v12, v12, v9, v10")
        A("v_max_u32 v12, v12, v11")
        A("s_nop 1")
        for mod in ("quad_perm:[1,0,3,2]", "quad_perm:[2,3,0,1]", "row_half_mirror", "row_mirror"):
            A(f"v_max_u32_dpp v12, v12, v12 {mod} row_mask:0xf bank_mask:0xf")
            A("s_nop 1")
        for j in range(4):
            A(f"v_readlane_b32 s{60+j}, v12, {16*j}")
        A("s_max_u32 s60, s60, s61")
        A("s_max_u32 s62, s62, s63")
        A("s_max_u32 s60, s60, s62")
        A("v_mov_b32 v12, s60")
        A(f"ds_write_b32 v3, v12 offset:{(r&1)*16}")
        A("s_waitcnt lgkmcnt(0)")
        A("s_barrier")
        A(f"ds_read_b128 v[16:19], v13 offset:{(r&1)*16}")
        A("s_waitcnt lgkmcnt(0)")
        A("v_max3_u32 v12, v16, v17, v18")
        A("v_max_u32 v12, v12, v19")
        A("s_nop 0")
        A("v_readfirstlane_b32 s60, v12")
        A("s_and_b32 s61, s60, 0x7ff")
        A(f"s_sub_u32 s{sidx+r}, 2047, s61")
        for i in range(8):
            A(f"v_cmp_ne_u32 vcc, s60, v{4+i}")
            A("s_nop 1")
            A(f"v_cndmask_b32 v{4+i}, 0, v{4+i}, vcc")

WS_YP = 52 << 20
def gen_k4():
    name = "ffn1_kernel"
    kstart(name)
    A("s_cmp_ge_u32 s2, 96")
    A("s_cbranch_scc1 L_k4_end")
    A("s_load_dwordx2 s[6:7], s[0:1], 96")
    A("s_load_dwordx4 s[40:43], s[0:1], 56")
    A("s_load_dwordx2 s[44:45], s[0:1], 72")
    A("s_waitcnt lgkmcnt(0)")
    srd(8, 6, S*4, WS_SC)
    srd(12, 6, S*D*2, WS_LN2)
    srd(16, 40, D*F*2)
    srd(20, 42, D*F*2)
    srd(24, 6, 96*8*D*4, WS_YP)
    srd(28, 6, 32, WS_IDX)
    srd(48, 44, D*F*2)
    XB = 64
    RB = XB + 20480
    AB = RB + 32768
    A("v_lshrrev_b32 v21, 3, v0")
    A("v_and_b32 v22, 7, v0")
    A("v_mul_u32_u24 v23, 3072, v21")
    A("v_lshl_add_u32 v23, v22, 2, v23")
    A("s_lshl_b32 s3, s2, 5")
    A("v_add_u32 v23, s3, v23")
    W0 = 40
    for it in range(20):
        A(f"s_mov_b32 s3, {it*32*3072}")
        A(f"buffer_load_dword v{W0+2*it}, v23, s[16:19], s3 offen")
        A(f"buffer_load_dword v{W0+2*it+1}, v23, s[20:23], s3 offen")
    WD = 80
    A("v_lshlrev_b32 v24, 2, v0")
    A("s_mul_i32 s3, s2, 20480")
    for r in range(16):
        A(f"s_add_u32 s46, s3, {r*1280}")
        A(f"buffer_load_dword v{WD+r}, v24, s[48:51], s46 offen")
    A("v_cmp_gt_u32 vcc, 64, v0")
    A("s_and_saveexec_b64 s[60:61], vcc")
    for r in range(16):
        A(f"s_add_u32 s46, s3, {r*1280}")
        A(f"buffer_load_dword v{WD+16+r}, v24, s[48:51], s46 offen offset:1024")
    A("s_mov_b64 exec, s[60:61]")
    top8(8, 0, 32)
    A("s_cmp_lg_u32 s2, 0")
    A("s_cbranch_scc1 L_k4_noidx")
    A("v_cmp_gt_u32 vcc, 8, v0")
    A("s_and_saveexec_b64 s[60:61], vcc")
    A("v_mov_b32 v1, s32")
    for t in range(1, 8):
        A(f"v_cmp_eq_u32 vcc, {t}, v0")
        A(f"v_mov_b32 v2, s{32+t}")
        A("v_cndmask_b32 v1, v1, v2, vcc")
    A("v_lshlrev_b32 v2, 2, v0")
    A("buffer_store_dword v1, v2, s[28:31], 0 offen")
    A("s_mov_b64 exec, s[60:61]")
    L("L_k4_noidx")
    A("v_cmp_gt_u32 vcc, 160, v0")
    A("s_and_saveexec_b64 s[60:61], vcc")
    A("v_lshlrev_b32 v1, 3, v0")
    A("v_lshlrev_b32 v2, 7, v0")
    for t in range(8):
        A(f"s_mul_i32 s3, s{32+t}, 1280")
        A(f"buffer_load_dwordx2 v[{4+2*t}:{5+2*t}], v1, s[12:15], s3 offen")
    A("s_waitcnt vmcnt(0)")
    for t in range(8):
        A(f"v_lshlrev_b32 v25, 16, v{4+2*t}")
        A(f"v_and_b32 v26, 0xffff0000, v{4+2*t}")
        A(f"v_lshlrev_b32 v27, 16, v{5+2*t}")
        A(f"v_and_b32 v28, 0xffff0000, v{5+2*t}")
        for q in range(4):
            A(f"ds_write_b32 v2, v{25+q} offset:{XB + q*32 + t*4}")
    A("s_mov_b64 exec, s[60:61]")
    A("s_waitcnt vmcnt(0) lgkmcnt(0)")
    A("s_barrier")
    A("v_lshlrev_b32 v4, 5, v21")
    ACC = 120
    for i in range(32):
        A(f"v_mov_b32 v{ACC+i}, 0")
    XR = 8
    for it in range(20):
        A(f"ds_read_b128 v[{XR}:{XR+3}], v4 offset:{XB + it*32*32}")
        A(f"ds_read_b128 v[{XR+4}:{XR+7}], v4 offset:{XB + it*32*32 + 16}")
        A(f"s_waitcnt lgkmcnt(0)")
        for mat in range(2):
            w = W0 + 2*it + mat
            A(f"v_lshlrev_b32 v5, 16, v{w}")
            A(f"v_and_b32 v6, 0xffff0000, v{w}")
            for t in range(8):
                A(f"v_fmac_f32 v{ACC+(mat*2+0)*8+t}, v5, v{XR+t}")
                A(f"v_fmac_f32 v{ACC+(mat*2+1)*8+t}, v6, v{XR+t}")
    A("v_lshlrev_b32 v5, 10, v21")
    A("v_lshl_add_u32 v5, v22, 2, v5")
    for i in range(32):
        A(f"ds_write_b32 v5, v{ACC+i} offset:{RB + i*32}")
    A("s_waitcnt lgkmcnt(0)")
    A("s_barrier")
    A("v_cmp_gt_u32 vcc, 128, v0")
    A("s_and_saveexec_b64 s[60:61], vcc")
    A("v_lshrrev_b32 v1, 4, v0")
    A("v_and_b32 v2, 15, v0")
    A("v_and_b32 v3, 1, v2")
    A("v_lshl_add_u32 v3, v3, 3, v1")
    A("v_lshlrev_b32 v3, 5, v3")
    A("v_lshrrev_b32 v4, 1, v2")
    A("v_lshl_add_u32 v3, v4, 2, v3")
    for kq in range(32):
        A(f"ds_read_b32 v{ACC+kq}, v3 offset:{RB + kq*1024}")
        A(f"ds_read_b32 v{8+kq}, v3 offset:{RB + kq*1024 + 16*32}")
    A("s_waitcnt lgkmcnt(0)")
    for kq in range(1, 32):
        A(f"v_add_f32 v{ACC}, v{ACC}, v{ACC+kq}")
        A(f"v_add_f32 v8, v8, v{8+kq}")
    bf16r(ACC, ACC)
    bf16r(8, 8)
    A(f"v_mul_f32 v9, 0xbfb8aa3b, v{ACC}")
    A("v_exp_f32 v9, v9")
    A("s_nop 0")
    A("v_add_f32 v9, 1.0, v9")
    A("v_rcp_f32 v9, v9")
    A("s_nop 0")
    A(f"v_mul_f32 v9, v{ACC}, v9")
    bf16r(9, 9)
    A("v_mul_f32 v9, v9, v8")
    bf16r(9, 9)
    A("v_lshlrev_b32 v4, 5, v2")
    A("v_lshl_add_u32 v4, v1, 2, v4")
    A(f"ds_write_b32 v4, v9 offset:{AB}")
    A("s_mov_b64 exec, s[60:61]")
    A("s_waitcnt lgkmcnt(0)")
    A("s_barrier")
    A("v_mov_b32 v4, 0")
    for i in range(32):
        A(f"v_mov_b32 v{ACC+i}, 0")
    for r in range(16):
        A(f"ds_read_b128 v[{XR}:{XR+3}], v4 offset:{AB + r*32}")
        A(f"ds_read_b128 v[{XR+4}:{XR+7}], v4 offset:{AB + r*32 + 16}")
        A("s_waitcnt lgkmcnt(0)")
        for h in range(2):
            w = WD + 16*h + r
            A(f"v_lshlrev_b32 v5, 16, v{w}")
            A(f"v_and_b32 v6, 0xffff0000, v{w}")
            for t in range(8):
                A(f"v_fmac_f32 v{ACC+(h*2+0)*8+t}, v5, v{XR+t}")
                A(f"v_fmac_f32 v{ACC+(h*2+1)*8+t}, v6, v{XR+t}")
    A("v_lshlrev_b32 v1, 3, v0")
    A("s_mul_i32 s3, s2, 20480")
    for t in range(8):
        A(f"v_mov_b32 v8, v{ACC+t}")
        A(f"v_mov_b32 v9, v{ACC+8+t}")
        A(f"s_add_u32 s46, s3, {t*2560}")
        A(f"buffer_store_dwordx2 v[8:9], v1, s[24:27], s46 offen")
    A("v_cmp_gt_u32 vcc, 64, v0")
    A("s_and_saveexec_b64 s[60:61], vcc")
    for t in range(8):
        A(f"v_mov_b32 v8, v{ACC+16+t}")
        A(f"v_mov_b32 v9, v{ACC+24+t}")
        A(f"s_add_u32 s46, s3, {t*2560}")
        A(f"buffer_store_dwordx2 v[8:9], v1, s[24:27], s46 offen offset:2048")
    A("s_mov_b64 exec, s[60:61]")
    L("L_k4_end")
    A("s_endpgm")
    kdesc(name, 152)
    return AB + 512

def gen_k5():
    name = "ffn2_kernel"
    kstart(name)
    A("s_cmp_ge_u32 s2, 20")
    A("s_cbranch_scc1 L_k5_end")
    A("s_load_dwordx2 s[6:7], s[0:1], 96")
    A("s_load_dwordx2 s[42:43], s[0:1], 80")
    A("s_waitcnt lgkmcnt(0)")
    srd(8, 6, S*4, WS_SC)
    srd(12, 6, S*D*2, WS_LN2)
    srd(20, 42, S*D*2)
    srd(24, 6, 96*8*D*4, WS_YP)
    srd(28, 6, 32, WS_IDX)
    srd(44, 6, S*D*2, WS_H)
    A("s_lshl_b32 s3, s2, 8")
    A("v_add_u32 v1, s3, v0")
    A("v_mul_u32_u24 v2, 0x199a, v1")
    A("v_lshrrev_b32 v2, 22, v2")
    A("v_mul_u32_u24 v3, 640, v2")
    A("v_sub_u32 v3, v1, v3")
    A("v_lshlrev_b32 v4, 2, v2")
    A("buffer_load_dword v5, v4, s[28:31], 0 offen")
    A("v_lshlrev_b32 v1, 2, v1")
    for g in range(96):
        A(f"s_mov_b32 s3, {g*20480}")
        A(f"buffer_load_dword v{16+g}, v1, s[24:27], s3 offen")
    A("s_waitcnt vmcnt(63)")
    A("s_waitcnt vmcnt(0)")
    A("v_lshlrev_b32 v6, 2, v5")
    A("buffer_load_dword v9, v6, s[8:11], 0 offen")
    A("v_mul_u32_u24 v6, 1280, v5")
    A("v_lshl_add_u32 v6, v3, 1, v6")
    A("buffer_load_ushort v10, v6, s[12:15], 0 offen")
    A("buffer_load_ushort v11, v6, s[44:47], 0 offen")
    for g in range(1, 96):
        A(f"v_add_f32 v16, v16, v{16+g}")
    bf16r(8, 16)
    A("s_waitcnt vmcnt(0)")
    A("v_mul_f32 v9, 0xbfb8aa3b, v9")
    A("v_exp_f32 v9, v9")
    A("s_nop 0")
    A("v_add_f32 v9, 1.0, v9")
    A("v_rcp_f32 v9, v9")
    A("s_nop 0")
    bf16r(9, 9)
    A("v_mul_f32 v8, v8, v9")
    bf16r(8, 8)
    A("v_lshlrev_b32 v10, 16, v10")
    A("v_lshlrev_b32 v11, 16, v11")
    A("v_add_f32 v8, v10, v8")
    bf16r(8, 8)
    A("v_add_f32 v8, v11, v8")
    A("v_cvt_pk_bf16_f32 v8, v8, v8")
    A("buffer_store_short v8, v6, s[20:23], 0 offen")
    L("L_k5_end")
    A("s_endpgm")
    kdesc(name, 120)
    return 0

hdr = open('sequential_preLN__spectral_fnet__moe_arch_mod__prompt.s.ref').read().split('\n')
hdr = [l for l in hdr if l.startswith(';') and '@launch' not in l]
gen_ln1()
lds1 = gen_gemm1()
lds2 = gen_gemm2()
gen_k3()
lds4 = gen_k4()
lds5 = gen_k5()
launch = [
    "; @launch kernel=ln1_kernel grid=(512,1,1) block=(256,1,1) lds=0",
    f"; @launch kernel=gemm1_kernel grid=(256,1,1) block=(256,1,1) lds={lds1}",
    f"; @launch kernel=gemm2_kernel grid=(256,1,1) block=(256,1,1) lds={lds2}",
    "; @launch kernel=ln2_kernel grid=(512,1,1) block=(256,1,1) lds=0",
    f"; @launch kernel=ffn1_kernel grid=(96,1,1) block=(256,1,1) lds={lds4}",
    f"; @launch kernel=ffn2_kernel grid=(20,1,1) block=(256,1,1) lds={lds5}",
]
txt = "\n".join(hdr + launch + ['.amdgcn_target "amdgcn-amd-amdhsa--gfx950"', ".text"] + out +
                ['.section .rodata,"a"'] + descs) + "\n"
open(sys.argv[1] if len(sys.argv) > 1 else 'sequential_preLN__spectral_fnet__moe_arch_mod__prompt.s', 'w').write(txt)
print("ok", len(txt))
```

```python
import sys, os
EXP = os.environ.get('EXP','')

S, D, F = 2048, 640, 1536
WS_LN1 = 0
WS_ABT = 4 << 20
WS_P   = 16 << 20
WS_H   = 40 << 20
WS_LN2 = 44 << 20
WS_SC  = 48 << 20
WS_ACT = (48 << 20) + (64 << 10)
WS_IDX = (48 << 20) + (128 << 10)

out = []
import re as _re
def A(s):
    if s.startswith("buffer_"):
        m = _re.search(r"offset:(\d+)", s)
        assert not m or int(m.group(1)) < 4096, s
    out.append("    " + s)
def L(s):
    out.append(s + ":")
def C(s):
    out.append("    ; " + s)

def srd(dst, ptr, size, off=0):
    if off:
        A(f"s_add_u32 s{dst}, s{ptr}, {off}")
        A(f"s_addc_u32 s{dst+1}, s{ptr+1}, 0")
    else:
        A(f"s_mov_b32 s{dst}, s{ptr}")
        A(f"s_mov_b32 s{dst+1}, s{ptr+1}")
    A(f"s_mov_b32 s{dst+2}, {size}")
    A(f"s_mov_b32 s{dst+3}, 0x00020000")

def kstart(name):
    out.append(f".globl {name}")
    out.append(".p2align 8")
    out.append(f".type {name},@function")
    L(name)

descs = []
def kdesc(name, vgpr, sgpr=102):
    acc = (vgpr + 3) // 4 * 4
    descs.append(f""".p2align 6
.amdhsa_kernel {name}
  .amdhsa_next_free_vgpr {vgpr}
  .amdhsa_next_free_sgpr {sgpr}
  .amdhsa_accum_offset {acc}
  .amdhsa_group_segment_fixed_size 0
  .amdhsa_kernarg_size 104
  .amdhsa_user_sgpr_count 2
  .amdhsa_user_sgpr_kernarg_segment_ptr 1
  .amdhsa_system_sgpr_workgroup_id_x 1
.end_amdhsa_kernel""")

def wave_reduce_add(regs, stmp):
    A("s_nop 1")
    for mod in ("quad_perm:[1,0,3,2]", "quad_perm:[2,3,0,1]", "row_half_mirror", "row_mirror"):
        for r in regs:
            A(f"v_add_f32_dpp v{r}, v{r}, v{r} {mod} row_mask:0xf bank_mask:0xf")
        if len(regs) < 2:
            A("s_nop 1")
        else:
            A("s_nop 0")
    for i, r in enumerate(regs):
        for j in range(4):
            A(f"v_readlane_b32 s{stmp+4*i+j}, v{r}, {16*j}")
    A("s_nop 1")
    for i, r in enumerate(regs):
        A(f"v_mov_b32 v{r}, s{stmp+4*i}")
        for j in range(1, 4):
            A(f"v_add_f32 v{r}, s{stmp+4*i+j}, v{r}")

def bf16r(dst, src, tmp=None):
    A(f"v_cvt_pk_bf16_f32 v{dst}, v{src}, v{src}")
    A(f"v_lshlrev_b32 v{dst}, 16, v{dst}")

def ln_core(X, O, T, stmp):
    A(f"v_add_f32 v{T}, v{X}, v{X+1}")
    for j in range(2, 10):
        A(f"v_add_f32 v{T}, v{T}, v{X+j}")
    wave_reduce_add([T], stmp)
    A(f"v_mul_f32 v{T}, {1.0/640.0!r}, v{T}")
    A(f"v_sub_f32 v{T+1}, v{X}, v{T}")
    A(f"v_mul_f32 v{T+2}, v{T+1}, v{T+1}")
    for j in range(1, 10):
        A(f"v_sub_f32 v{T+1}, v{X+j}, v{T}")
        A(f"v_fmac_f32 v{T+2}, v{T+1}, v{T+1}")
    wave_reduce_add([T+2], stmp)
    A(f"v_mul_f32 v{T+2}, {1.0/640.0!r}, v{T+2}")
    bf16r(T+2, T+2)
    A(f"v_add_f32 v{T+2}, 0x3727c5ac, v{T+2}")
    bf16r(T+2, T+2)
    A(f"v_sqrt_f32 v{T+2}, v{T+2}")
    A("s_nop 0")
    bf16r(T+2, T+2)
    A(f"v_rcp_f32 v{T+2}, v{T+2}")
    bf16r(T, T)
    for j in range(10):
        A(f"v_sub_f32 v{T+1}, v{X+j}, v{T}")
        bf16r(T+1, T+1)
        A(f"v_mul_f32 v{T+1}, v{T+1}, v{T+2}")
        bf16r(O+j, T+1)

def gen_ln1():
    name = "ln1_kernel"
    kstart(name)
    A("s_cmp_ge_u32 s2, 512")
    A("s_cbranch_scc1 L_ln1_end")
    A("s_load_dwordx2 s[4:5], s[0:1], 0")
    A("s_load_dwordx2 s[6:7], s[0:1], 96")
    A("v_lshrrev_b32 v1, 6, v0")
    A("v_and_b32 v2, 63, v0")
    A("s_lshl_b32 s3, s2, 2")
    A("v_add_u32 v1, s3, v1")
    A("v_mul_u32_u24 v1, 1280, v1")
    A("v_lshl_add_u32 v1, v2, 2, v1")
    A("s_waitcnt lgkmcnt(0)")
    srd(8, 4, S*D*2)
    srd(12, 6, S*D*2, WS_LN1)
    for j in range(5):
        A(f"buffer_load_dword v{10+j}, v1, s[8:11], 0 offen offset:{j*256}")
    A("s_waitcnt vmcnt(0)")
    for j in range(5):
        A(f"v_lshlrev_b32 v{20+2*j}, 16, v{10+j}")
        A(f"v_and_b32 v{21+2*j}, 0xffff0000, v{10+j}")
    ln_core(20, 30, 40, 20)
    for j in range(5):
        A(f"v_cvt_pk_bf16_f32 v{10+j}, v{30+2*j}, v{31+2*j}")
    for j in range(5):
        A(f"buffer_store_dword v{10+j}, v1, s[12:15], 0 offen offset:{j*256}")
    L("L_ln1_end")
    A("s_endpgm")
    kdesc(name, 48)

def gen_gemm(name, BM, BN, KIT, nwg, setup, epilogue, strideA, strideB, NST=4, lnfuse=False):
    MT, NT = BM // 32, BN // 32
    CA, CB = BM // 8, BN // 8
    NA, NB = CA // 4, CB // 4
    NL = NA + NB
    STG = (BM + BN) * 128
    vOA, vOB = 1, 2
    vR = 3
    vT = 11
    acc0 = 16
    fA = acc0 + MT * NT * 4
    fB = fA + 2 * MT * 4
    nv = fB + 2 * NT * 4
    vS = nv
    if lnfuse:
        nv += 2 * MT + NT + 16
    kstart(name)
    A(f"s_cmp_ge_u32 s2, {nwg}")
    A(f"s_cbranch_scc1 L_{name}_end")
    if EXP == 'empty':
        A(f"s_branch L_{name}_end")
    setup()
    A(f"v_lshrrev_b32 v{vT}, 6, v0")
    A("s_nop 0")
    A(f"v_readfirstlane_b32 s32, v{vT}")
    A("s_lshl_b32 s33, s32, 10")
    A(f"s_mul_i32 s34, s32, {8*strideA}")
    A(f"s_mul_i32 s35, s32, {8*strideB}")
    A(f"v_bfe_u32 v{vT+1}, v0, 3, 3")
    A(f"v_and_b32 v{vT+2}, 7, v0")
    A(f"v_xor_b32 v{vT+2}, v{vT+2}, v{vT+1}")
    A(f"v_lshlrev_b32 v{vT+2}, 4, v{vT+2}")
    A(f"s_mov_b32 s20, {strideA}")
    A(f"s_mov_b32 s21, {strideB}")
    A(f"v_mul_lo_u32 v{vOA}, v{vT+1}, s20")
    A(f"v_add_u32 v{vOA}, v{vOA}, v{vT+2}")
    A(f"v_mul_lo_u32 v{vOB}, v{vT+1}, s21")
    A(f"v_add_u32 v{vOB}, v{vOB}, v{vT+2}")
    A(f"v_and_b32 v{vT+1}, 15, v0")
    A(f"v_bfe_u32 v{vT+2}, v0, 4, 2")
    A(f"v_and_b32 v{vT+3}, 7, v0")
    A(f"v_xor_b32 v{vT+2}, v{vT+2}, v{vT+3}")
    A(f"v_lshlrev_b32 v{vT+2}, 4, v{vT+2}")
    A(f"v_lshrrev_b32 v{vT+3}, 1, v{vT}")
    A(f"v_mul_u32_u24 v{vT+3}, {BM//2}, v{vT+3}")
    A(f"v_add_u32 v{vT+3}, v{vT+3}, v{vT+1}")
    A(f"v_lshl_add_u32 v{vR}, v{vT+3}, 7, v{vT+2}")
    A(f"v_xor_b32 v{vR+1}, 64, v{vR}")
    A(f"v_and_b32 v{vT+3}, 1, v{vT}")
    A(f"v_mul_u32_u24 v{vT+3}, {BN//2}, v{vT+3}")
    A(f"v_add_u32 v{vT+3}, v{vT+3}, v{vT+1}")
    A(f"v_lshl_add_u32 v{vR+2}, v{vT+3}, 7, v{vT+2}")
    A(f"v_add_u32 v{vR+2}, {BM*128}, v{vR+2}")
    A(f"v_xor_b32 v{vR+3}, 64, v{vR+2}")
    for i in range(MT * NT * 4):
        A(f"v_mov_b32 v{acc0+i}, 0")
    if lnfuse:
        for i in range(2 * MT + NT):
            A(f"v_mov_b32 v{vS+i}, 0")
        A("s_mov_b32 s42, 0x3f803f80")
    def gload():
        for i in range(NA):
            A(f"s_add_u32 m0, s36, {i*4096}")
            A(f"s_add_u32 s22, s40, {i*32*strideA}")
            A(f"buffer_load_dwordx4 v{vOA}, s[8:11], s22 offen lds" if 'vreg' not in EXP else f"buffer_load_dwordx4 v[{200+4*i}:{203+4*i}], v{vOA}, s[8:11], s22 offen")
        for i in range(NB):
            A(f"s_add_u32 m0, s36, {BM*128 + i*4096}")
            A(f"s_add_u32 s22, s41, {i*32*strideB}")
            A(f"buffer_load_dwordx4 v{vOB}, s[12:15], s22 offen lds" if 'vreg' not in EXP else f"buffer_load_dwordx4 v[{220+4*i}:{223+4*i}], v{vOB}, s[12:15], s22 offen")
        A("s_add_u32 s38, s38, 128")
        A(f"s_cmp_ge_u32 s38, {KIT*128}")
        A("s_cselect_b32 s38, 0, s38")
        A("s_add_u32 s40, s34, s38")
        A("s_add_u32 s41, s35, s38")
        A(f"s_add_u32 s36, s36, {STG}")
        A(f"s_cmp_ge_u32 s36, {NST*STG}")
        A(f"s_cselect_b32 s22, {NST*STG}, 0")
        A("s_sub_u32 s36, s36, s22")
    def compute():
        for i in range(4):
            A(f"v_add_u32 v{vR+4+i}, s37, v{vR+i}")
        for ks in range(2):
            for m in range(MT):
                A(f"ds_read_b128 v[{fA+(ks*MT+m)*4}:{fA+(ks*MT+m)*4+3}], v{vR+4+ks} offset:{m*2048}")
            for n in range(NT):
                A(f"ds_read_b128 v[{fB+(ks*NT+n)*4}:{fB+(ks*NT+n)*4+3}], v{vR+4+2+ks} offset:{n*2048}")
        A(f"s_add_u32 s37, s37, {STG}")
        A(f"s_cmp_ge_u32 s37, {NST*STG}")
        A(f"s_cselect_b32 s22, {NST*STG}, 0")
        A("s_sub_u32 s37, s37, s22")
        for ks in range(2):
            A(f"s_waitcnt lgkmcnt({MT+NT if ks == 0 else 0})")
            for m in range(MT):
                for n in range(NT):
                    a = acc0 + (m*NT+n)*4
                    A(f"v_mfma_f32_16x16x32_bf16 v[{a}:{a+3}], v[{fA+(ks*MT+m)*4}:{fA+(ks*MT+m)*4+3}], v[{fB+(ks*NT+n)*4}:{fB+(ks*NT+n)*4+3}], v[{a}:{a+3}]")
            if lnfuse:
                for m in range(MT):
                    for j in range(4):
                        r = fA+(ks*MT+m)*4+j
                        A(f"v_dot2_f32_bf16 v{vS+m}, v{r}, s42, v{vS+m}")
                        A(f"v_dot2_f32_bf16 v{vS+MT+m}, v{r}, v{r}, v{vS+MT+m}")
                for n in range(NT):
                    for j in range(4):
                        r = fB+(ks*NT+n)*4+j
                        A(f"v_dot2_f32_bf16 v{vS+2*MT+n}, v{r}, s42, v{vS+2*MT+n}")
    A("s_mov_b32 s36, s33")
    A("s_mov_b32 s37, 0")
    A("s_mul_i32 s38, s2, 7")
    A("s_lshr_b32 s22, s2, 4")
    A("s_add_u32 s38, s38, s22")
    A(f"s_mul_hi_u32 s22, s38, {(2**32 + KIT - 1)//KIT}")
    A(f"s_mul_i32 s22, s22, {KIT}")
    A("s_sub_u32 s38, s38, s22")
    A("s_lshl_b32 s38, s38, 7")
    A("s_add_u32 s40, s34, s38")
    A("s_add_u32 s41, s35, s38")
    A("s_mov_b32 s39, 0")
    L(f"L_{name}_pro")
    gload()
    A("s_add_u32 s39, s39, 1")
    A(f"s_cmp_lt_u32 s39, {NST-1}")
    A(f"s_cbranch_scc1 L_{name}_pro")
    A("s_mov_b32 s39, 0")
    L(f"L_{name}_loop")
    A(f"s_waitcnt vmcnt({(NST-2) * NL})")
    A("s_barrier")
    gload()
    compute()
    A("s_add_u32 s39, s39, 1")
    A(f"s_cmp_lt_u32 s39, {KIT-(NST-1)}")
    A(f"s_cbranch_scc1 L_{name}_loop")
    A("s_waitcnt vmcnt(0)")
    A("s_barrier")
    L(f"L_{name}_tail")
    compute()
    A("s_add_u32 s39, s39, 1")
    A(f"s_cmp_lt_u32 s39, {KIT}")
    A(f"s_cbranch_scc1 L_{name}_tail")
    A("s_nop 7")
    if lnfuse:
        NSV = 2 * MT + NT
        t0 = (vS + NSV + 3) // 4 * 4
        XO = NST * STG
        A(f"v_lshrrev_b32 v{t0}, 6, v0")
        A(f"v_lshlrev_b32 v{t0}, 12, v{t0}")
        A(f"v_add_u32 v{t0}, {XO}, v{t0}")
        XO = 0
        A(f"v_and_b32 v{t0+1}, 63, v0")
        A(f"v_lshl_add_u32 v{t0+1}, v{t0+1}, 2, v{t0}")
        A(f"v_and_b32 v{t0+2}, 15, v0")
        A(f"v_lshl_add_u32 v{t0+2}, v{t0+2}, 2, v{t0}")
        for i in range(NSV):
            A(f"ds_write_b32 v{t0+1}, v{vS+i} offset:{XO + i*256}")
        A("s_waitcnt lgkmcnt(0)")
        for i in range(NSV):
            for g in range(4):
                A(f"ds_read_b32 v{t0+4+g}, v{t0+2} offset:{XO + i*256 + g*64}")
            A("s_waitcnt lgkmcnt(0)")
            A(f"v_add_f32 v{vS+i}, v{t0+4}, v{t0+5}")
            A(f"v_add_f32 v{t0+6}, v{t0+6}, v{t0+7}")
            A(f"v_add_f32 v{vS+i}, v{vS+i}, v{t0+6}")
        for m in range(MT):
            s1, s2 = vS+m, vS+MT+m
            A(f"v_mul_f32 v{s1}, {1.0/640.0!r}, v{s1}")
            A(f"v_mul_f32 v{s2}, {1.0/640.0!r}, v{s2}")
            A(f"v_fma_f32 v{s2}, -v{s1}, v{s1}, v{s2}")
            A(f"v_max_f32 v{s2}, 0, v{s2}")
            bf16r(s2, s2)
            A(f"v_add_f32 v{s2}, 0x3727c5ac, v{s2}")
            bf16r(s2, s2)
            A(f"v_sqrt_f32 v{s2}, v{s2}")
            A("s_nop 0")
            bf16r(s2, s2)
            A(f"v_rcp_f32 v{s2}, v{s2}")
            bf16r(s1, s1)
            A(f"ds_write_b32 v{t0+2}, v{s1} offset:{XO + 3072 + m*128}")
            A(f"ds_write_b32 v{t0+2}, v{s2} offset:{XO + 3072 + m*128 + 64}")
        A(f"v_bfe_u32 v{t0+3}, v0, 4, 2")
        A(f"v_lshl_add_u32 v{t0+3}, v{t0+3}, 4, v{t0}")
        A("s_waitcnt lgkmcnt(0)")
        for m in range(MT):
            A(f"ds_read_b128 v[{t0+4}:{t0+7}], v{t0+3} offset:{XO + 3072 + m*128}")
            A(f"ds_read_b128 v[{t0+8}:{t0+11}], v{t0+3} offset:{XO + 3072 + m*128 + 64}")
            A("s_waitcnt lgkmcnt(0)")
            for n in range(NT):
                a = acc0 + (m*NT+n)*4
                for r in range(4):
                    A(f"v_fma_f32 v{a+r}, -v{t0+4+r}, v{vS+2*MT+n}, v{a+r}")
                    A(f"v_mul_f32 v{a+r}, v{a+r}, v{t0+8+r}")
    if 'nostore' not in EXP:
        epilogue(MT, NT, acc0, vT)
    L(f"L_{name}_end")
    A("s_endpgm")
    kdesc(name, 256 if 'vreg' in EXP else max(nv, 64))
    return NST * STG + (16384 if lnfuse else 0)

def gen_gemm1():
    def setup():
        A("s_load_dwordx2 s[4:5], s[0:1], 96")
        A("s_load_dwordx2 s[6:7], s[0:1], 0")
        A("s_load_dwordx4 s[24:27], s[0:1], 24")
        A("s_and_b32 s16, s2, 7")
        A("s_lshr_b32 s17, s2, 3")
        A("s_waitcnt lgkmcnt(0)")
        A("s_mul_i32 s18, s17, 81920")
        A("s_add_u32 s8, s6, s18")
        A("s_addc_u32 s9, s7, 0")
        A(f"s_sub_u32 s10, {S*D*2}, s18")
        A("s_mov_b32 s11, 0x00020000")
        A("s_cmp_lt_u32 s16, 4")
        A("s_cselect_b32 s12, s24, s26")
        A("s_cselect_b32 s13, s25, s27")
        A("s_and_b32 s18, s16, 3")
        A("s_mul_i32 s18, s18, 204800")
        A("s_add_u32 s12, s12, s18")
        A("s_addc_u32 s13, s13, 0")
        A(f"s_sub_u32 s14, {D*D*2}, s18")
        A("s_mov_b32 s15, 0x00020000")
        srd(28, 4, 1280*2048*2, WS_ABT)
    def epilogue(MT, NT, acc0, vT):
        A(f"v_lshrrev_b32 v{vT}, 6, v0")
        A(f"v_and_b32 v{vT+1}, 15, v0")
        A(f"v_and_b32 v{vT+2}, 1, v{vT}")
        A(f"v_mul_u32_u24 v{vT+2}, 80, v{vT+2}")
        A(f"v_add_u32 v{vT+1}, v{vT+1}, v{vT+2}")
        A("s_mul_i32 s18, s16, 160")
        A(f"v_add_u32 v{vT+1}, s18, v{vT+1}")
        A(f"v_lshlrev_b32 v{vT+1}, 12, v{vT+1}")
        A(f"v_lshrrev_b32 v{vT+2}, 1, v{vT}")
        A(f"v_lshlrev_b32 v{vT+2}, 5, v{vT+2}")
        A(f"v_bfe_u32 v{vT+3}, v0, 4, 2")
        A(f"v_lshl_add_u32 v{vT+2}, v{vT+3}, 2, v{vT+2}")
        A("s_lshl_b32 s18, s17, 6")
        A(f"v_add_u32 v{vT+2}, s18, v{vT+2}")
        A(f"v_lshl_add_u32 v{vT+1}, v{vT+2}, 1, v{vT+1}")
        for m in range(MT):
            for n in range(NT):
                a = acc0 + (m*NT+n)*4
                A(f"v_cvt_pk_bf16_f32 v{a}, v{a}, v{a+1}")
                A(f"v_cvt_pk_bf16_f32 v{a+1}, v{a+2}, v{a+3}")
                A(f"s_mov_b32 s18, {n*16*4096 + m*32}")
                A(f"buffer_store_dwordx2 v[{a}:{a+1}], v{vT+1}, s[28:31], s18 offen")
    return gen_gemm("gemm1_kernel", 64, 160, 10, 256, setup, epilogue, 1280, 1280, lnfuse=True)

def gen_gemm2():
    def setup():
        A("s_load_dwordx2 s[4:5], s[0:1], 96")
        A("s_load_dwordx4 s[24:27], s[0:1], 8")
        A("s_and_b32 s16, s2, 3")
        A("s_bfe_u32 s17, s2, 0x20002")
        A("s_lshr_b32 s19, s2, 4")
        A("s_waitcnt lgkmcnt(0)")
        A("s_lshr_b32 s18, s16, 1")
        A("s_mul_i32 s18, s18, 640")
        A("s_mul_i32 s20, s17, 160")
        A("s_add_u32 s18, s18, s20")
        A("s_lshl_b32 s18, s18, 12")
        A("s_and_b32 s20, s16, 1")
        A("s_lshl_b32 s21, s20, 11")
        A("s_add_u32 s18, s18, s21")
        A(f"s_add_u32 s20, s18, {WS_ABT}")
        A("s_add_u32 s8, s4, s20")
        A("s_addc_u32 s9, s5, 0")
        A(f"s_sub_u32 s10, {1280*2048*2}, s18")
        A("s_mov_b32 s11, 0x00020000")
        A("s_cmp_lt_u32 s16, 2")
        A("s_cselect_b32 s12, s24, s26")
        A("s_cselect_b32 s13, s25, s27")
        A("s_lshl_b32 s18, s19, 19")
        A("s_add_u32 s18, s18, s21")
        A("s_add_u32 s12, s12, s18")
        A("s_addc_u32 s13, s13, 0")
        A(f"s_sub_u32 s14, {S*S*2}, s18")
        A("s_mov_b32 s15, 0x00020000")
        srd(28, 4, 4*S*D*4, WS_P)
    def epilogue(MT, NT, acc0, vT):
        A(f"v_lshrrev_b32 v{vT}, 6, v0")
        A(f"v_and_b32 v{vT+1}, 15, v0")
        A(f"v_and_b32 v{vT+2}, 1, v{vT}")
        A(f"v_lshl_add_u32 v{vT+1}, v{vT+2}, 6, v{vT+1}")
        A("s_lshl_b32 s18, s19, 7")
        A("s_lshl_b32 s20, s16, 11")
        A("s_add_u32 s18, s18, s20")
        A(f"v_add_u32 v{vT+1}, s18, v{vT+1}")
        A(f"v_mul_u32_u24 v{vT+1}, 2560, v{vT+1}")
        A(f"v_lshrrev_b32 v{vT+2}, 1, v{vT}")
        A(f"v_mul_u32_u24 v{vT+2}, 80, v{vT+2}")
        A(f"v_bfe_u32 v{vT+3}, v0, 4, 2")
        A(f"v_lshl_add_u32 v{vT+2}, v{vT+3}, 2, v{vT+2}")
        A("s_mul_i32 s18, s17, 160")
        A(f"v_add_u32 v{vT+2}, s18, v{vT+2}")
        A(f"v_lshl_add_u32 v{vT+1}, v{vT+2}, 2, v{vT+1}")
        for m in range(MT):
            for n in range(NT):
                a = acc0 + (m*NT+n)*4
                A(f"s_mov_b32 s18, {n*16*2560 + m*64}")
                A(f"buffer_store_dwordx4 v[{a}:{a+3}], v{vT+1}, s[28:31], s18 offen")
    return gen_gemm("gemm2_kernel", 160, 128, 16, 256, setup, epilogue, 4096, 4096)

def gen_k3():
    name = "ln2_kernel"
    kstart(name)
    A("s_cmp_ge_u32 s2, 512")
    A("s_cbranch_scc1 L_k3_end")
    A("s_load_dwordx2 s[4:5], s[0:1], 0")
    A("s_load_dwordx2 s[6:7], s[0:1], 96")
    A("s_load_dwordx2 s[40:41], s[0:1], 48")
    A("s_load_dwordx2 s[42:43], s[0:1], 80")
    A("v_lshrrev_b32 v1, 6, v0")
    A("v_and_b32 v2, 63, v0")
    A("s_lshl_b32 s3, s2, 2")
    A("v_add_u32 v1, s3, v1")
    A("v_mul_u32_u24 v3, 1280, v1")
    A("v_lshl_add_u32 v3, v2, 2, v3")
    A("v_lshlrev_b32 v4, 1, v3")
    A("v_lshlrev_b32 v5, 2, v2")
    A("s_waitcnt lgkmcnt(0)")
    srd(8, 4, S*D*2)
    srd(12, 6, 4*S*D*4, WS_P)
    srd(16, 40, D*2)
    srd(44, 42, S*D*2)
    srd(48, 6, S*D*2, WS_H)
    srd(52, 6, S*D*2, WS_LN2)
    srd(56, 6, S*4, WS_SC)
    for j in range(5):
        A(f"buffer_load_dword v{10+j}, v3, s[8:11], 0 offen offset:{j*256}")
    for c in range(4):
        A(f"s_mov_b32 s3, {c*S*D*4}")
        for j in range(5):
            A(f"buffer_load_dwordx2 v[{20+(c*5+j)*2}:{21+(c*5+j)*2}], v4, s[12:15], s3 offen offset:{j*512}")
    for j in range(5):
        A(f"buffer_load_dword v{60+j}, v5, s[16:19], 0 offen offset:{j*256}")
    A("s_waitcnt vmcnt(0)")
    for j in range(5):
        for q in range(2):
            p0, p1, p2, p3 = [20+(c*5+j)*2+q for c in range(4)]
            A(f"v_add_f32 v6, v{p0}, v{p1}")
            bf16r(6, 6)
            A(f"v_add_f32 v7, v{p2}, v{p3}")
            bf16r(7, 7)
            A("v_sub_f32 v6, v6, v7")
            bf16r(6, 6)
            if q == 0:
                A(f"v_lshlrev_b32 v7, 16, v{10+j}")
            else:
                A(f"v_and_b32 v7, 0xffff0000, v{10+j}")
            A("v_add_f32 v6, v7, v6")
            bf16r(70+2*j+q, 6)
    ln_core(70, 80, 90, 20)
    for j in range(5):
        A(f"v_lshlrev_b32 v6, 16, v{60+j}")
        A(f"v_and_b32 v7, 0xffff0000, v{60+j}")
        if j == 0:
            A("v_mul_f32 v8, v6, v80")
        else:
            A(f"v_fmac_f32 v8, v6, v{80+2*j}")
        A(f"v_fmac_f32 v8, v7, v{81+2*j}")
    wave_reduce_add([8], 20)
    bf16r(8, 8)
    A("v_lshlrev_b32 v9, 2, v1")
    A("v_cmp_eq_u32 vcc, 0, v2")
    A("s_and_saveexec_b64 s[60:61], vcc")
    A("buffer_store_dword v8, v9, s[56:59], 0 offen")
    A("s_mov_b64 exec, s[60:61]")
    for j in range(5):
        A(f"v_cvt_pk_bf16_f32 v6, v{70+2*j}, v{71+2*j}")
        A(f"buffer_store_dword v6, v3, s[48:51], 0 offen offset:{j*256}")
        A(f"v_cvt_pk_bf16_f32 v7, v{80+2*j}, v{81+2*j}")
        A(f"buffer_store_dword v7, v3, s[52:55], 0 offen offset:{j*256}")
        A(f"v_add_f32 v8, v{70+2*j}, v{80+2*j}")
        A(f"v_add_f32 v9, v{71+2*j}, v{81+2*j}")
        A(f"v_cvt_pk_bf16_f32 v8, v8, v9")
        A(f"buffer_store_dword v8, v3, s[44:47], 0 offen offset:{j*256}")
    L("L_k3_end")
    A("s_endpgm")
    kdesc(name, 96)

def top8(sc_srd, lds_base, sidx):
    A("v_lshlrev_b32 v1, 5, v0")
    A(f"buffer_load_dwordx4 v[4:7], v1, s[{sc_srd}:{sc_srd+3}], 0 offen")
    A(f"buffer_load_dwordx4 v[8:11], v1, s[{sc_srd}:{sc_srd+3}], 0 offen offset:16")
    A("v_lshlrev_b32 v2, 3, v0")
    A("v_sub_u32 v2, 2047, v2")
    A("v_lshrrev_b32 v3, 6, v0")
    A(f"v_lshlrev_b32 v3, 2, v3")
    A(f"v_add_u32 v3, {lds_base}, v3")
    A(f"v_mov_b32 v13, {lds_base}")
    A("s_waitcnt vmcnt(0)")
    for i in range(8):
        A(f"v_ashrrev_i32 v12, 31, v{4+i}")
        A(f"v_or_b32 v12, 0x80000000, v12")
        A(f"v_xor_b32 v{4+i}, v{4+i}, v12")
        A(f"v_and_b32 v{4+i}, 0xffff0000, v{4+i}")
        A(f"v_subrev_u32 v12, {i}, v2")
        A(f"v_or_b32 v{4+i}, v{4+i}, v12")
    for r in range(8):
        A("v_max3_u32 v12, v4, v5, v6")
        A("v_max3_u32 v12, v12, v7, v8")
        A("v_max3_u32 v12, v12, v9, v10")
        A("v_max_u32 v12, v12, v11")
        A("s_nop 1")
        for mod in ("quad_perm:[1,0,3,2]", "quad_perm:[2,3,0,1]", "row_half_mirror", "row_mirror"):
            A(f"v_max_u32_dpp v12, v12, v12 {mod} row_mask:0xf bank_mask:0xf")
            A("s_nop 1")
        for j in range(4):
            A(f"v_readlane_b32 s{60+j}, v12, {16*j}")
        A("s_max_u32 s60, s60, s61")
        A("s_max_u32 s62, s62, s63")
        A("s_max_u32 s60, s60, s62")
        A("v_mov_b32 v12, s60")
        A(f"ds_write_b32 v3, v12 offset:{(r&1)*16}")
        A("s_waitcnt lgkmcnt(0)")
        A("s_barrier")
        A(f"ds_read_b128 v[16:19], v13 offset:{(r&1)*16}")
        A("s_waitcnt lgkmcnt(0)")
        A("v_max3_u32 v12, v16, v17, v18")
        A("v_max_u32 v12, v12, v19")
        A("s_nop 0")
        A("v_readfirstlane_b32 s60, v12")
        A("s_and_b32 s61, s60, 0x7ff")
        A(f"s_sub_u32 s{sidx+r}, 2047, s61")
        for i in range(8):
            A(f"v_cmp_ne_u32 vcc, s60, v{4+i}")
            A("s_nop 1")
            A(f"v_cndmask_b32 v{4+i}, 0, v{4+i}, vcc")

WS_YP = 52 << 20
def gen_k4():
    name = "ffn1_kernel"
    kstart(name)
    A("s_cmp_ge_u32 s2, 96")
    A("s_cbranch_scc1 L_k4_end")
    A("s_load_dwordx2 s[6:7], s[0:1], 96")
    A("s_load_dwordx4 s[40:43], s[0:1], 56")
    A("s_load_dwordx2 s[44:45], s[0:1], 72")
    A("s_waitcnt lgkmcnt(0)")
    srd(8, 6, S*4, WS_SC)
    srd(12, 6, S*D*2, WS_LN2)
    srd(16, 40, D*F*2)
    srd(20, 42, D*F*2)
    srd(24, 6, 96*8*D*4, WS_YP)
    srd(28, 6, 32, WS_IDX)
    srd(48, 44, D*F*2)
    XB = 64
    RB = XB + 20480
    AB = RB + 32768
    A("v_lshrrev_b32 v21, 3, v0")
    A("v_and_b32 v22, 7, v0")
    A("v_mul_u32_u24 v23, 3072, v21")
    A("v_lshl_add_u32 v23, v22, 2, v23")
    A("s_lshl_b32 s3, s2, 5")
    A("v_add_u32 v23, s3, v23")
    W0 = 40
    for it in range(0 if EXP == 'now' else 20):
        A(f"s_mov_b32 s3, {it*32*3072}")
        A(f"buffer_load_dword v{W0+2*it}, v23, s[16:19], s3 offen")
        A(f"buffer_load_dword v{W0+2*it+1}, v23, s[20:23], s3 offen")
    WD = 80
    A("v_lshlrev_b32 v24, 2, v0")
    A("s_mul_i32 s3, s2, 20480")
    for r in range(16):
        A(f"s_add_u32 s46, s3, {r*1280}")
        A(f"buffer_load_dword v{WD+r}, v24, s[48:51], s46 offen")
    A("v_cmp_gt_u32 vcc, 64, v0")
    A("s_and_saveexec_b64 s[60:61], vcc")
    for r in range(16):
        A(f"s_add_u32 s46, s3, {r*1280}")
        A(f"buffer_load_dword v{WD+16+r}, v24, s[48:51], s46 offen offset:1024")
    A("s_mov_b64 exec, s[60:61]")
    if EXP == 'notop8':
        for t in range(8):
            A(f"s_mov_b32 s{32+t}, {t*100}")
    else:
        top8(8, 0, 32)
    A("s_cmp_lg_u32 s2, 0")
    A("s_cbranch_scc1 L_k4_noidx")
    A("v_cmp_gt_u32 vcc, 8, v0")
    A("s_and_saveexec_b64 s[60:61], vcc")
    A("v_mov_b32 v1, s32")
    for t in range(1, 8):
        A(f"v_cmp_eq_u32 vcc, {t}, v0")
        A(f"v_mov_b32 v2, s{32+t}")
        A("v_cndmask_b32 v1, v1, v2, vcc")
    A("v_lshlrev_b32 v2, 2, v0")
    A("buffer_store_dword v1, v2, s[28:31], 0 offen")
    A("s_mov_b64 exec, s[60:61]")
    L("L_k4_noidx")
    A("v_cmp_gt_u32 vcc, 160, v0")
    A("s_and_saveexec_b64 s[60:61], vcc")
    A("v_lshlrev_b32 v1, 3, v0")
    A("v_lshlrev_b32 v2, 7, v0")
    for t in range(8):
        A(f"s_mul_i32 s3, s{32+t}, 1280")
        A(f"buffer_load_dwordx2 v[{4+2*t}:{5+2*t}], v1, s[12:15], s3 offen")
    A("s_waitcnt vmcnt(0)")
    for t in range(8):
        A(f"v_lshlrev_b32 v25, 16, v{4+2*t}")
        A(f"v_and_b32 v26, 0xffff0000, v{4+2*t}")
        A(f"v_lshlrev_b32 v27, 16, v{5+2*t}")
        A(f"v_and_b32 v28, 0xffff0000, v{5+2*t}")
        for q in range(4):
            A(f"ds_write_b32 v2, v{25+q} offset:{XB + q*32 + t*4}")
    A("s_mov_b64 exec, s[60:61]")
    A("s_waitcnt vmcnt(0) lgkmcnt(0)")
    A("s_barrier")
    A("v_lshlrev_b32 v4, 5, v21")
    ACC = 120
    for i in range(32):
        A(f"v_mov_b32 v{ACC+i}, 0")
    XR = 8
    for it in range(20):
        A(f"ds_read_b128 v[{XR}:{XR+3}], v4 offset:{XB + it*32*32}")
        A(f"ds_read_b128 v[{XR+4}:{XR+7}], v4 offset:{XB + it*32*32 + 16}")
        A(f"s_waitcnt lgkmcnt(0)")
        for mat in range(2):
            w = W0 + 2*it + mat
            A(f"v_lshlrev_b32 v5, 16, v{w}")
            A(f"v_and_b32 v6, 0xffff0000, v{w}")
            for t in range(8):
                A(f"v_fmac_f32 v{ACC+(mat*2+0)*8+t}, v5, v{XR+t}")
                A(f"v_fmac_f32 v{ACC+(mat*2+1)*8+t}, v6, v{XR+t}")
    A("v_lshlrev_b32 v5, 10, v21")
    A("v_lshl_add_u32 v5, v22, 2, v5")
    for i in range(32):
        A(f"ds_write_b32 v5, v{ACC+i} offset:{RB + i*32}")
    A("s_waitcnt lgkmcnt(0)")
    A("s_barrier")
    A("v_cmp_gt_u32 vcc, 128, v0")
    A("s_and_saveexec_b64 s[60:61], vcc")
    A("v_lshrrev_b32 v1, 4, v0")
    A("v_and_b32 v2, 15, v0")
    A("v_and_b32 v3, 1, v2")
    A("v_lshl_add_u32 v3, v3, 3, v1")
    A("v_lshlrev_b32 v3, 5, v3")
    A("v_lshrrev_b32 v4, 1, v2")
    A("v_lshl_add_u32 v3, v4, 2, v3")
    for kq in range(32):
        A(f"ds_read_b32 v{ACC+kq}, v3 offset:{RB + kq*1024}")
        A(f"ds_read_b32 v{8+kq}, v3 offset:{RB + kq*1024 + 16*32}")
    A("s_waitcnt lgkmcnt(0)")
    for kq in range(1, 32):
        A(f"v_add_f32 v{ACC}, v{ACC}, v{ACC+kq}")
        A(f"v_add_f32 v8, v8, v{8+kq}")
    bf16r(ACC, ACC)
    bf16r(8, 8)
    A(f"v_mul_f32 v9, 0xbfb8aa3b, v{ACC}")
    A("v_exp_f32 v9, v9")
    A("s_nop 0")
    A("v_add_f32 v9, 1.0, v9")
    A("v_rcp_f32 v9, v9")
    A("s_nop 0")
    A(f"v_mul_f32 v9, v{ACC}, v9")
    bf16r(9, 9)
    A("v_mul_f32 v9, v9, v8")
    bf16r(9, 9)
    A("v_lshlrev_b32 v4, 5, v2")
    A("v_lshl_add_u32 v4, v1, 2, v4")
    A(f"ds_write_b32 v4, v9 offset:{AB}")
    A("s_mov_b64 exec, s[60:61]")
    A("s_waitcnt lgkmcnt(0)")
    A("s_barrier")
    A("v_mov_b32 v4, 0")
    for i in range(32):
        A(f"v_mov_b32 v{ACC+i}, 0")
    for r in range(16):
        A(f"ds_read_b128 v[{XR}:{XR+3}], v4 offset:{AB + r*32}")
        A(f"ds_read_b128 v[{XR+4}:{XR+7}], v4 offset:{AB + r*32 + 16}")
        A("s_waitcnt lgkmcnt(0)")
        for h in range(2):
            w = WD + 16*h + r
            A(f"v_lshlrev_b32 v5, 16, v{w}")
            A(f"v_and_b32 v6, 0xffff0000, v{w}")
            for t in range(8):
                A(f"v_fmac_f32 v{ACC+(h*2+0)*8+t}, v5, v{XR+t}")
                A(f"v_fmac_f32 v{ACC+(h*2+1)*8+t}, v6, v{XR+t}")
    A("v_lshlrev_b32 v1, 3, v0")
    A("s_mul_i32 s3, s2, 20480")
    for t in range(8):
        A(f"v_mov_b32 v8, v{ACC+t}")
        A(f"v_mov_b32 v9, v{ACC+8+t}")
        A(f"s_add_u32 s46, s3, {t*2560}")
        A(f"buffer_store_dwordx2 v[8:9], v1, s[24:27], s46 offen")
    A("v_cmp_gt_u32 vcc, 64, v0")
    A("s_and_saveexec_b64 s[60:61], vcc")
    for t in range(8):
        A(f"v_mov_b32 v8, v{ACC+16+t}")
        A(f"v_mov_b32 v9, v{ACC+24+t}")
        A(f"s_add_u32 s46, s3, {t*2560}")
        A(f"buffer_store_dwordx2 v[8:9], v1, s[24:27], s46 offen offset:2048")
    A("s_mov_b64 exec, s[60:61]")
    L("L_k4_end")
    A("s_endpgm")
    kdesc(name, 152)
    return AB + 512

def gen_k5():
    name = "ffn2_kernel"
    kstart(name)
    A("s_cmp_ge_u32 s2, 20")
    A("s_cbranch_scc1 L_k5_end")
    A("s_load_dwordx2 s[6:7], s[0:1], 96")
    A("s_load_dwordx2 s[42:43], s[0:1], 80")
    A("s_waitcnt lgkmcnt(0)")
    srd(8, 6, S*4, WS_SC)
    srd(12, 6, S*D*2, WS_LN2)
    srd(20, 42, S*D*2)
    srd(24, 6, 96*8*D*4, WS_YP)
    srd(28, 6, 32, WS_IDX)
    srd(44, 6, S*D*2, WS_H)
    A("s_lshl_b32 s3, s2, 8")
    A("v_add_u32 v1, s3, v0")
    A("v_mul_u32_u24 v2, 0x199a, v1")
    A("v_lshrrev_b32 v2, 22, v2")
    A("v_mul_u32_u24 v3, 640, v2")
    A("v_sub_u32 v3, v1, v3")
    A("v_lshlrev_b32 v4, 2, v2")
    A("buffer_load_dword v5, v4, s[28:31], 0 offen")
    A("v_lshlrev_b32 v1, 2, v1")
    for g in range(96):
        A(f"s_mov_b32 s3, {g*20480}")
        A(f"buffer_load_dword v{16+g}, v1, s[24:27], s3 offen")
    A("s_waitcnt vmcnt(63)")
    A("s_waitcnt vmcnt(0)")
    A("v_lshlrev_b32 v6, 2, v5")
    A("buffer_load_dword v9, v6, s[8:11], 0 offen")
    A("v_mul_u32_u24 v6, 1280, v5")
    A("v_lshl_add_u32 v6, v3, 1, v6")
    A("buffer_load_ushort v10, v6, s[12:15], 0 offen")
    A("buffer_load_ushort v11, v6, s[44:47], 0 offen")
    for g in range(1, 96):
        A(f"v_add_f32 v16, v16, v{16+g}")
    bf16r(8, 16)
    A("s_waitcnt vmcnt(0)")
    A("v_mul_f32 v9, 0xbfb8aa3b, v9")
    A("v_exp_f32 v9, v9")
    A("s_nop 0")
    A("v_add_f32 v9, 1.0, v9")
    A("v_rcp_f32 v9, v9")
    A("s_nop 0")
    bf16r(9, 9)
    A("v_mul_f32 v8, v8, v9")
    bf16r(8, 8)
    A("v_lshlrev_b32 v10, 16, v10")
    A("v_lshlrev_b32 v11, 16, v11")
    A("v_add_f32 v8, v10, v8")
    bf16r(8, 8)
    A("v_add_f32 v8, v11, v8")
    A("v_cvt_pk_bf16_f32 v8, v8, v8")
    A("buffer_store_short v8, v6, s[20:23], 0 offen")
    L("L_k5_end")
    A("s_endpgm")
    kdesc(name, 120)
    return 0

hdr = open('sequential_preLN__spectral_fnet__moe_arch_mod__prompt.s.ref').read().split('\n')
hdr = [l for l in hdr if l.startswith(';') and '@launch' not in l]
lds1 = gen_gemm1()
lds2 = gen_gemm2()
gen_k3()
lds4 = gen_k4()
lds5 = gen_k5()
launch = [
    f"; @launch kernel=gemm1_kernel grid=(256,1,1) block=(256,1,1) lds={lds1}",
    f"; @launch kernel=gemm2_kernel grid=(256,1,1) block=(256,1,1) lds={lds2}",
    "; @launch kernel=ln2_kernel grid=(512,1,1) block=(256,1,1) lds=0",
    f"; @launch kernel=ffn1_kernel grid=(96,1,1) block=(256,1,1) lds={lds4}",
    f"; @launch kernel=ffn2_kernel grid=(20,1,1) block=(256,1,1) lds={lds5}",
]
txt = "\n".join(hdr + launch + ['.amdgcn_target "amdgcn-amd-amdhsa--gfx950"', ".text"] + out +
                ['.section .rodata,"a"'] + descs) + "\n"
open(sys.argv[1] if len(sys.argv) > 1 else 'sequential_preLN__spectral_fnet__moe_arch_mod__prompt.s', 'w').write(txt)
print("ok", len(txt))
```

```python
import sys, os
EXP = os.environ.get('EXP','')

S, D, F = 2048, 640, 1536
WS_LN1 = 0
WS_ABT = 4 << 20
WS_P   = 16 << 20
WS_H   = 40 << 20
WS_LN2 = 44 << 20
WS_SC  = 48 << 20
WS_ACT = (48 << 20) + (64 << 10)
WS_IDX = (48 << 20) + (128 << 10)

out = []
import re as _re
def A(s):
    if s.startswith("buffer_"):
        m = _re.search(r"offset:(\d+)", s)
        assert not m or int(m.group(1)) < 4096, s
    out.append("    " + s)
def L(s):
    out.append(s + ":")
def C(s):
    out.append("    ; " + s)

def srd(dst, ptr, size, off=0):
    if off:
        A(f"s_add_u32 s{dst}, s{ptr}, {off}")
        A(f"s_addc_u32 s{dst+1}, s{ptr+1}, 0")
    else:
        A(f"s_mov_b32 s{dst}, s{ptr}")
        A(f"s_mov_b32 s{dst+1}, s{ptr+1}")
    A(f"s_mov_b32 s{dst+2}, {size}")
    A(f"s_mov_b32 s{dst+3}, 0x00020000")

def kstart(name):
    out.append(f".globl {name}")
    out.append(".p2align 8")
    out.append(f".type {name},@function")
    L(name)

descs = []
def kdesc(name, vgpr, sgpr=102):
    acc = (vgpr + 3) // 4 * 4
    descs.append(f""".p2align 6
.amdhsa_kernel {name}
  .amdhsa_next_free_vgpr {vgpr}
  .amdhsa_next_free_sgpr {sgpr}
  .amdhsa_accum_offset {acc}
  .amdhsa_group_segment_fixed_size 0
  .amdhsa_kernarg_size 104
  .amdhsa_user_sgpr_count 2
  .amdhsa_user_sgpr_kernarg_segment_ptr 1
  .amdhsa_system_sgpr_workgroup_id_x 1
.end_amdhsa_kernel""")

def wave_reduce_add(regs, stmp):
    A("s_nop 1")
    for mod in ("quad_perm:[1,0,3,2]", "quad_perm:[2,3,0,1]", "row_half_mirror", "row_mirror"):
        for r in regs:
            A(f"v_add_f32_dpp v{r}, v{r}, v{r} {mod} row_mask:0xf bank_mask:0xf")
        if len(regs) < 2:
            A("s_nop 1")
        else:
            A("s_nop 0")
    for i, r in enumerate(regs):
        for j in range(4):
            A(f"v_readlane_b32 s{stmp+4*i+j}, v{r}, {16*j}")
    A("s_nop 1")
    for i, r in enumerate(regs):
        A(f"v_mov_b32 v{r}, s{stmp+4*i}")
        for j in range(1, 4):
            A(f"v_add_f32 v{r}, s{stmp+4*i+j}, v{r}")

def bf16r(dst, src, tmp=None):
    A(f"v_cvt_pk_bf16_f32 v{dst}, v{src}, v{src}")
    A(f"v_lshlrev_b32 v{dst}, 16, v{dst}")

def ln_core(X, O, T, stmp):
    A(f"v_add_f32 v{T}, v{X}, v{X+1}")
    for j in range(2, 10):
        A(f"v_add_f32 v{T}, v{T}, v{X+j}")
    wave_reduce_add([T], stmp)
    A(f"v_mul_f32 v{T}, {1.0/640.0!r}, v{T}")
    A(f"v_sub_f32 v{T+1}, v{X}, v{T}")
    A(f"v_mul_f32 v{T+2}, v{T+1}, v{T+1}")
    for j in range(1, 10):
        A(f"v_sub_f32 v{T+1}, v{X+j}, v{T}")
        A(f"v_fmac_f32 v{T+2}, v{T+1}, v{T+1}")
    wave_reduce_add([T+2], stmp)
    A(f"v_mul_f32 v{T+2}, {1.0/640.0!r}, v{T+2}")
    bf16r(T+2, T+2)
    A(f"v_add_f32 v{T+2}, 0x3727c5ac, v{T+2}")
    bf16r(T+2, T+2)
    A(f"v_sqrt_f32 v{T+2}, v{T+2}")
    A("s_nop 0")
    bf16r(T+2, T+2)
    A(f"v_rcp_f32 v{T+2}, v{T+2}")
    bf16r(T, T)
    for j in range(10):
        A(f"v_sub_f32 v{T+1}, v{X+j}, v{T}")
        bf16r(T+1, T+1)
        A(f"v_mul_f32 v{T+1}, v{T+1}, v{T+2}")
        bf16r(O+j, T+1)

def gen_ln1():
    name = "ln1_kernel"
    kstart(name)
    A("s_cmp_ge_u32 s2, 512")
    A("s_cbranch_scc1 L_ln1_end")
    A("s_load_dwordx2 s[4:5], s[0:1], 0")
    A("s_load_dwordx2 s[6:7], s[0:1], 96")
    A("v_lshrrev_b32 v1, 6, v0")
    A("v_and_b32 v2, 63, v0")
    A("s_lshl_b32 s3, s2, 2")
    A("v_add_u32 v1, s3, v1")
    A("v_mul_u32_u24 v1, 1280, v1")
    A("v_lshl_add_u32 v1, v2, 2, v1")
    A("s_waitcnt lgkmcnt(0)")
    srd(8, 4, S*D*2)
    srd(12, 6, S*D*2, WS_LN1)
    for j in range(5):
        A(f"buffer_load_dword v{10+j}, v1, s[8:11], 0 offen offset:{j*256}")
    A("s_waitcnt vmcnt(0)")
    for j in range(5):
        A(f"v_lshlrev_b32 v{20+2*j}, 16, v{10+j}")
        A(f"v_and_b32 v{21+2*j}, 0xffff0000, v{10+j}")
    ln_core(20, 30, 40, 20)
    for j in range(5):
        A(f"v_cvt_pk_bf16_f32 v{10+j}, v{30+2*j}, v{31+2*j}")
    for j in range(5):
        A(f"buffer_store_dword v{10+j}, v1, s[12:15], 0 offen offset:{j*256}")
    L("L_ln1_end")
    A("s_endpgm")
    kdesc(name, 48)

def gen_gemm(name, BM, BN, KIT, nwg, setup, epilogue, strideA, strideB, NST=2, lnfuse=False):
    MT, NT = BM // 32, BN // 32
    CA, CB = BM // 4, BN // 4
    NA, NB = CA // 4, CB // 4
    NL = NA + NB
    STG = (BM + BN) * 256
    vOA, vOB = 1, 2
    vR = 3
    vT = 13
    acc0 = 20
    fA = acc0 + MT * NT * 4
    fB = fA + 2 * MT * 4
    nv = fB + 2 * NT * 4
    vS = nv
    if lnfuse:
        nv += 2 * MT + NT + 16
    kstart(name)
    A(f"s_cmp_ge_u32 s2, {nwg}")
    A(f"s_cbranch_scc1 L_{name}_end")
    if EXP == 'empty':
        A(f"s_branch L_{name}_end")
    setup()
    A(f"v_lshrrev_b32 v{vT}, 6, v0")
    A("s_nop 0")
    A(f"v_readfirstlane_b32 s32, v{vT}")
    A("s_lshl_b32 s33, s32, 10")
    A(f"s_mul_i32 s34, s32, {4*strideA}")
    A(f"s_mul_i32 s35, s32, {4*strideB}")
    A(f"v_bfe_u32 v{vT+1}, v0, 4, 2")
    A(f"v_and_b32 v{vT+2}, 15, v0")
    A(f"v_lshrrev_b32 v{vT+3}, 4, v0")
    A(f"v_xor_b32 v{vT+2}, v{vT+2}, v{vT+3}")
    A(f"v_lshlrev_b32 v{vT+2}, 4, v{vT+2}")
    A(f"s_mov_b32 s20, {strideA}")
    A(f"s_mov_b32 s21, {strideB}")
    A(f"v_mul_lo_u32 v{vOA}, v{vT+1}, s20")
    A(f"v_add_u32 v{vOA}, v{vOA}, v{vT+2}")
    A(f"v_mul_lo_u32 v{vOB}, v{vT+1}, s21")
    A(f"v_add_u32 v{vOB}, v{vOB}, v{vT+2}")
    if 'contig' in EXP:
        A(f"v_and_b32 v{vOA}, 63, v0")
        A(f"v_lshlrev_b32 v{vOA}, 4, v{vOA}")
        A(f"v_mov_b32 v{vOB}, v{vOA}")
    A(f"v_and_b32 v{vT+1}, 15, v0")
    A(f"v_bfe_u32 v{vT+2}, v0, 4, 2")
    A(f"v_xor_b32 v{vT+2}, v{vT+2}, v{vT+1}")
    A(f"v_lshlrev_b32 v{vT+2}, 4, v{vT+2}")
    A(f"v_lshrrev_b32 v{vT+3}, 1, v{vT}")
    A(f"v_mul_u32_u24 v{vT+3}, {BM//2}, v{vT+3}")
    A(f"v_add_u32 v{vT+3}, v{vT+3}, v{vT+1}")
    A(f"v_lshl_add_u32 v{vR}, v{vT+3}, 8, v{vT+2}")
    A(f"v_and_b32 v{vT+3}, 1, v{vT}")
    A(f"v_mul_u32_u24 v{vT+3}, {BN//2}, v{vT+3}")
    A(f"v_add_u32 v{vT+3}, v{vT+3}, v{vT+1}")
    A(f"v_lshl_add_u32 v{vR+1}, v{vT+3}, 8, v{vT+2}")
    A(f"v_add_u32 v{vR+1}, {BM*256}, v{vR+1}")
    for i in range(MT * NT * 4):
        A(f"v_mov_b32 v{acc0+i}, 0")
    if lnfuse:
        for i in range(2 * MT + NT):
            A(f"v_mov_b32 v{vS+i}, 0")
        A("s_mov_b32 s42, 0x3f803f80")
    def gload():
        for i in range(NA):
            A(f"s_add_u32 m0, s36, {i*4096}")
            A(f"s_add_u32 s22, s40, {i*16*strideA}")
            A(f"buffer_load_dwordx4 v{vOA}, s[8:11], s22 offen lds" if 'vreg' not in EXP else f"buffer_load_dwordx4 v[{200+4*i}:{203+4*i}], v{vOA}, s[8:11], s22 offen")
        for i in range(NB):
            A(f"s_add_u32 m0, s36, {BM*256 + i*4096}")
            A(f"s_add_u32 s22, s41, {i*16*strideB}")
            A(f"buffer_load_dwordx4 v{vOB}, s[12:15], s22 offen lds" if 'vreg' not in EXP else f"buffer_load_dwordx4 v[{220+4*i}:{223+4*i}], v{vOB}, s[12:15], s22 offen")
        A("s_add_u32 s38, s38, 256")
        A(f"s_cmp_ge_u32 s38, {KIT*256}")
        A("s_cselect_b32 s38, 0, s38")
        A("s_add_u32 s40, s34, s38")
        A("s_add_u32 s41, s35, s38")
        A(f"s_add_u32 s36, s36, {STG}")
        A(f"s_cmp_ge_u32 s36, {NST*STG}")
        A(f"s_cselect_b32 s22, {NST*STG}, 0")
        A("s_sub_u32 s36, s36, s22")
    def compute():
        for ks in range(4):
            A(f"v_add_u32 v{vR+2+2*ks}, s37, v{vR}")
            A(f"v_add_u32 v{vR+3+2*ks}, s37, v{vR+1}")
            if ks:
                A(f"v_xor_b32 v{vR+2+2*ks}, {ks*64}, v{vR+2+2*ks}")
                A(f"v_xor_b32 v{vR+3+2*ks}, {ks*64}, v{vR+3+2*ks}")
        A(f"s_add_u32 s37, s37, {STG}")
        A(f"s_cmp_ge_u32 s37, {NST*STG}")
        A(f"s_cselect_b32 s22, {NST*STG}, 0")
        A("s_sub_u32 s37, s37, s22")
        def rd(ks):
            fs = ks & 1
            for m in range(MT):
                A(f"ds_read_b128 v[{fA+(fs*MT+m)*4}:{fA+(fs*MT+m)*4+3}], v{vR+2+2*ks} offset:{m*4096}")
            for n in range(NT):
                A(f"ds_read_b128 v[{fB+(fs*NT+n)*4}:{fB+(fs*NT+n)*4+3}], v{vR+3+2*ks} offset:{n*4096}")
        rd(0)
        for ks in range(4):
            fs = ks & 1
            if ks < 3:
                rd(ks + 1)
            A(f"s_waitcnt lgkmcnt({MT+NT if ks < 3 else 0})")
            for m in range(MT):
                for n in range(NT):
                    a = acc0 + (m*NT+n)*4
                    if 'nomfma' in EXP: continue
                    A(f"v_mfma_f32_16x16x32_bf16 v[{a}:{a+3}], v[{fA+(fs*MT+m)*4}:{fA+(fs*MT+m)*4+3}], v[{fB+(fs*NT+n)*4}:{fB+(fs*NT+n)*4+3}], v[{a}:{a+3}]")
            if lnfuse:
                for m in range(MT):
                    for j in range(4):
                        r = fA+(fs*MT+m)*4+j
                        A(f"v_dot2_f32_bf16 v{vS+m}, v{r}, s42, v{vS+m}")
                        A(f"v_dot2_f32_bf16 v{vS+MT+m}, v{r}, v{r}, v{vS+MT+m}")
                for n in range(NT):
                    for j in range(4):
                        r = fB+(fs*NT+n)*4+j
                        A(f"v_dot2_f32_bf16 v{vS+2*MT+n}, v{r}, s42, v{vS+2*MT+n}")
    A("s_mov_b32 s36, s33")
    A("s_mov_b32 s37, 0")
    A("s_mul_i32 s38, s2, 7")
    A("s_lshr_b32 s22, s2, 4")
    A("s_add_u32 s38, s38, s22")
    A(f"s_mul_hi_u32 s22, s38, {(2**32 + KIT - 1)//KIT}")
    A(f"s_mul_i32 s22, s22, {KIT}")
    A("s_sub_u32 s38, s38, s22")
    A("s_lshl_b32 s38, s38, 8")
    A("s_add_u32 s40, s34, s38")
    A("s_add_u32 s41, s35, s38")
    A("s_mov_b32 s39, 0")
    L(f"L_{name}_pro")
    gload()
    A("s_add_u32 s39, s39, 1")
    A(f"s_cmp_lt_u32 s39, {NST-1}")
    A(f"s_cbranch_scc1 L_{name}_pro")
    A("s_mov_b32 s39, 0")
    L(f"L_{name}_loop")
    A(f"s_waitcnt vmcnt({(NST-2) * NL})")
    A("s_barrier")
    gload()
    compute()
    A("s_add_u32 s39, s39, 1")
    A(f"s_cmp_lt_u32 s39, {KIT-(NST-1)}")
    A(f"s_cbranch_scc1 L_{name}_loop")
    A("s_waitcnt vmcnt(0)")
    A("s_barrier")
    L(f"L_{name}_tail")
    compute()
    A("s_add_u32 s39, s39, 1")
    A(f"s_cmp_lt_u32 s39, {KIT}")
    A(f"s_cbranch_scc1 L_{name}_tail")
    A("s_nop 7")
    if lnfuse:
        NSV = 2 * MT + NT
        t0 = (vS + NSV + 3) // 4 * 4
        XO = NST * STG
        A(f"v_lshrrev_b32 v{t0}, 6, v0")
        A(f"v_lshlrev_b32 v{t0}, 12, v{t0}")
        A(f"v_add_u32 v{t0}, {XO}, v{t0}")
        XO = 0
        A(f"v_and_b32 v{t0+1}, 63, v0")
        A(f"v_lshl_add_u32 v{t0+1}, v{t0+1}, 2, v{t0}")
        A(f"v_and_b32 v{t0+2}, 15, v0")
        A(f"v_lshl_add_u32 v{t0+2}, v{t0+2}, 2, v{t0}")
        for i in range(NSV):
            A(f"ds_write_b32 v{t0+1}, v{vS+i} offset:{XO + i*256}")
        A("s_waitcnt lgkmcnt(0)")
        for i in range(NSV):
            for g in range(4):
                A(f"ds_read_b32 v{t0+4+g}, v{t0+2} offset:{XO + i*256 + g*64}")
            A("s_waitcnt lgkmcnt(0)")
            A(f"v_add_f32 v{vS+i}, v{t0+4}, v{t0+5}")
            A(f"v_add_f32 v{t0+6}, v{t0+6}, v{t0+7}")
            A(f"v_add_f32 v{vS+i}, v{vS+i}, v{t0+6}")
        for m in range(MT):
            s1, s2 = vS+m, vS+MT+m
            A(f"v_mul_f32 v{s1}, {1.0/640.0!r}, v{s1}")
            A(f"v_mul_f32 v{s2}, {1.0/640.0!r}, v{s2}")
            A(f"v_fma_f32 v{s2}, -v{s1}, v{s1}, v{s2}")
            A(f"v_max_f32 v{s2}, 0, v{s2}")
            bf16r(s2, s2)
            A(f"v_add_f32 v{s2}, 0x3727c5ac, v{s2}")
            bf16r(s2, s2)
            A(f"v_sqrt_f32 v{s2}, v{s2}")
            A("s_nop 0")
            bf16r(s2, s2)
            A(f"v_rcp_f32 v{s2}, v{s2}")
            bf16r(s1, s1)
            A(f"ds_write_b32 v{t0+2}, v{s1} offset:{XO + 3072 + m*128}")
            A(f"ds_write_b32 v{t0+2}, v{s2} offset:{XO + 3072 + m*128 + 64}")
        A(f"v_bfe_u32 v{t0+3}, v0, 4, 2")
        A(f"v_lshl_add_u32 v{t0+3}, v{t0+3}, 4, v{t0}")
        A("s_waitcnt lgkmcnt(0)")
        for m in range(MT):
            A(f"ds_read_b128 v[{t0+4}:{t0+7}], v{t0+3} offset:{XO + 3072 + m*128}")
            A(f"ds_read_b128 v[{t0+8}:{t0+11}], v{t0+3} offset:{XO + 3072 + m*128 + 64}")
            A("s_waitcnt lgkmcnt(0)")
            for n in range(NT):
                a = acc0 + (m*NT+n)*4
                for r in range(4):
                    A(f"v_fma_f32 v{a+r}, -v{t0+4+r}, v{vS+2*MT+n}, v{a+r}")
                    A(f"v_mul_f32 v{a+r}, v{a+r}, v{t0+8+r}")
    if 'nostore' not in EXP:
        epilogue(MT, NT, acc0, vT)
    L(f"L_{name}_end")
    A("s_endpgm")
    kdesc(name, 256 if 'vreg' in EXP else max(nv, 64))
    return NST * STG + (16384 if lnfuse else 0)

def gen_gemm1():
    def setup():
        A("s_load_dwordx2 s[4:5], s[0:1], 96")
        A("s_load_dwordx2 s[6:7], s[0:1], 0")
        A("s_load_dwordx4 s[24:27], s[0:1], 24")
        A("s_and_b32 s16, s2, 7")
        A("s_lshr_b32 s17, s2, 3")
        A("s_waitcnt lgkmcnt(0)")
        A("s_mul_i32 s18, s17, 81920")
        A("s_add_u32 s8, s6, s18")
        A("s_addc_u32 s9, s7, 0")
        A(f"s_sub_u32 s10, {S*D*2}, s18")
        A("s_mov_b32 s11, 0x00020000")
        A("s_cmp_lt_u32 s16, 4")
        A("s_cselect_b32 s12, s24, s26")
        A("s_cselect_b32 s13, s25, s27")
        A("s_and_b32 s18, s16, 3")
        A("s_mul_i32 s18, s18, 204800")
        A("s_add_u32 s12, s12, s18")
        A("s_addc_u32 s13, s13, 0")
        A(f"s_sub_u32 s14, {D*D*2}, s18")
        A("s_mov_b32 s15, 0x00020000")
        srd(28, 4, 1280*2048*2, WS_ABT)
    def epilogue(MT, NT, acc0, vT):
        A(f"v_lshrrev_b32 v{vT}, 6, v0")
        A(f"v_and_b32 v{vT+1}, 15, v0")
        A(f"v_and_b32 v{vT+2}, 1, v{vT}")
        A(f"v_mul_u32_u24 v{vT+2}, 80, v{vT+2}")
        A(f"v_add_u32 v{vT+1}, v{vT+1}, v{vT+2}")
        A("s_mul_i32 s18, s16, 160")
        A(f"v_add_u32 v{vT+1}, s18, v{vT+1}")
        A(f"v_lshlrev_b32 v{vT+1}, 12, v{vT+1}")
        A(f"v_lshrrev_b32 v{vT+2}, 1, v{vT}")
        A(f"v_lshlrev_b32 v{vT+2}, 5, v{vT+2}")
        A(f"v_bfe_u32 v{vT+3}, v0, 4, 2")
        A(f"v_lshl_add_u32 v{vT+2}, v{vT+3}, 2, v{vT+2}")
        A("s_lshl_b32 s18, s17, 6")
        A(f"v_add_u32 v{vT+2}, s18, v{vT+2}")
        A(f"v_lshl_add_u32 v{vT+1}, v{vT+2}, 1, v{vT+1}")
        for m in range(MT):
            for n in range(NT):
                a = acc0 + (m*NT+n)*4
                A(f"v_cvt_pk_bf16_f32 v{a}, v{a}, v{a+1}")
                A(f"v_cvt_pk_bf16_f32 v{a+1}, v{a+2}, v{a+3}")
                A(f"s_mov_b32 s18, {n*16*4096 + m*32}")
                A(f"buffer_store_dwordx2 v[{a}:{a+1}], v{vT+1}, s[28:31], s18 offen")
    return gen_gemm("gemm1_kernel", 64, 160, 5, 256, setup, epilogue, 1280, 1280, lnfuse=True)

def gen_gemm2():
    def setup():
        A("s_load_dwordx2 s[4:5], s[0:1], 96")
        A("s_load_dwordx4 s[24:27], s[0:1], 8")
        A("s_and_b32 s16, s2, 3")
        A("s_bfe_u32 s17, s2, 0x20002")
        A("s_lshr_b32 s19, s2, 4")
        A("s_waitcnt lgkmcnt(0)")
        A("s_lshr_b32 s18, s16, 1")
        A("s_mul_i32 s18, s18, 640")
        A("s_mul_i32 s20, s17, 160")
        A("s_add_u32 s18, s18, s20")
        A("s_lshl_b32 s18, s18, 12")
        A("s_and_b32 s20, s16, 1")
        A("s_lshl_b32 s21, s20, 11")
        A("s_add_u32 s18, s18, s21")
        A(f"s_add_u32 s20, s18, {WS_ABT}")
        A("s_add_u32 s8, s4, s20")
        A("s_addc_u32 s9, s5, 0")
        A(f"s_sub_u32 s10, {1280*2048*2}, s18")
        A("s_mov_b32 s11, 0x00020000")
        A("s_cmp_lt_u32 s16, 2")
        A("s_cselect_b32 s12, s24, s26")
        A("s_cselect_b32 s13, s25, s27")
        A("s_lshl_b32 s18, s19, 19")
        A("s_add_u32 s18, s18, s21")
        A("s_add_u32 s12, s12, s18")
        A("s_addc_u32 s13, s13, 0")
        A(f"s_sub_u32 s14, {S*S*2}, s18")
        A("s_mov_b32 s15, 0x00020000")
        srd(28, 4, 4*S*D*4, WS_P)
    def epilogue(MT, NT, acc0, vT):
        A(f"v_lshrrev_b32 v{vT}, 6, v0")
        A(f"v_and_b32 v{vT+1}, 15, v0")
        A(f"v_and_b32 v{vT+2}, 1, v{vT}")
        A(f"v_lshl_add_u32 v{vT+1}, v{vT+2}, 6, v{vT+1}")
        A("s_lshl_b32 s18, s19, 7")
        A("s_lshl_b32 s20, s16, 11")
        A("s_add_u32 s18, s18, s20")
        A(f"v_add_u32 v{vT+1}, s18, v{vT+1}")
        A(f"v_mul_u32_u24 v{vT+1}, 2560, v{vT+1}")
        A(f"v_lshrrev_b32 v{vT+2}, 1, v{vT}")
        A(f"v_mul_u32_u24 v{vT+2}, 80, v{vT+2}")
        A(f"v_bfe_u32 v{vT+3}, v0, 4, 2")
        A(f"v_lshl_add_u32 v{vT+2}, v{vT+3}, 2, v{vT+2}")
        A("s_mul_i32 s18, s17, 160")
        A(f"v_add_u32 v{vT+2}, s18, v{vT+2}")
        A(f"v_lshl_add_u32 v{vT+1}, v{vT+2}, 2, v{vT+1}")
        for m in range(MT):
            for n in range(NT):
                a = acc0 + (m*NT+n)*4
                A(f"s_mov_b32 s18, {n*16*2560 + m*64}")
                A(f"buffer_store_dwordx4 v[{a}:{a+3}], v{vT+1}, s[28:31], s18 offen")
    return gen_gemm("gemm2_kernel", 160, 128, 8, 256, setup, epilogue, 4096, 4096)

def gen_k3():
    name = "ln2_kernel"
    kstart(name)
    A("s_cmp_ge_u32 s2, 512")
    A("s_cbranch_scc1 L_k3_end")
    A("s_load_dwordx2 s[4:5], s[0:1], 0")
    A("s_load_dwordx2 s[6:7], s[0:1], 96")
    A("s_load_dwordx2 s[40:41], s[0:1], 48")
    A("s_load_dwordx2 s[42:43], s[0:1], 80")
    A("v_lshrrev_b32 v1, 6, v0")
    A("v_and_b32 v2, 63, v0")
    A("s_lshl_b32 s3, s2, 2")
    A("v_add_u32 v1, s3, v1")
    A("v_mul_u32_u24 v3, 1280, v1")
    A("v_lshl_add_u32 v3, v2, 2, v3")
    A("v_lshlrev_b32 v4, 1, v3")
    A("v_lshlrev_b32 v5, 2, v2")
    A("s_waitcnt lgkmcnt(0)")
    srd(8, 4, S*D*2)
    srd(12, 6, 4*S*D*4, WS_P)
    srd(16, 40, D*2)
    srd(44, 42, S*D*2)
    srd(48, 6, S*D*2, WS_H)
    srd(52, 6, S*D*2, WS_LN2)
    srd(56, 6, S*4, WS_SC)
    for j in range(5):
        A(f"buffer_load_dword v{10+j}, v3, s[8:11], 0 offen offset:{j*256}")
    for c in range(4):
        A(f"s_mov_b32 s3, {c*S*D*4}")
        for j in range(5):
            A(f"buffer_load_dwordx2 v[{20+(c*5+j)*2}:{21+(c*5+j)*2}], v4, s[12:15], s3 offen offset:{j*512}")
    for j in range(5):
        A(f"buffer_load_dword v{60+j}, v5, s[16:19], 0 offen offset:{j*256}")
    A("s_waitcnt vmcnt(0)")
    for j in range(5):
        for q in range(2):
            p0, p1, p2, p3 = [20+(c*5+j)*2+q for c in range(4)]
            A(f"v_add_f32 v6, v{p0}, v{p1}")
            bf16r(6, 6)
            A(f"v_add_f32 v7, v{p2}, v{p3}")
            bf16r(7, 7)
            A("v_sub_f32 v6, v6, v7")
            bf16r(6, 6)
            if q == 0:
                A(f"v_lshlrev_b32 v7, 16, v{10+j}")
            else:
                A(f"v_and_b32 v7, 0xffff0000, v{10+j}")
            A("v_add_f32 v6, v7, v6")
            bf16r(70+2*j+q, 6)
    ln_core(70, 80, 90, 20)
    for j in range(5):
        A(f"v_lshlrev_b32 v6, 16, v{60+j}")
        A(f"v_and_b32 v7, 0xffff0000, v{60+j}")
        if j == 0:
            A("v_mul_f32 v8, v6, v80")
        else:
            A(f"v_fmac_f32 v8, v6, v{80+2*j}")
        A(f"v_fmac_f32 v8, v7, v{81+2*j}")
    wave_reduce_add([8], 20)
    bf16r(8, 8)
    A("v_lshlrev_b32 v9, 2, v1")
    A("v_cmp_eq_u32 vcc, 0, v2")
    A("s_and_saveexec_b64 s[60:61], vcc")
    A("buffer_store_dword v8, v9, s[56:59], 0 offen")
    A("s_mov_b64 exec, s[60:61]")
    for j in range(5):
        A(f"v_cvt_pk_bf16_f32 v6, v{70+2*j}, v{71+2*j}")
        A(f"buffer_store_dword v6, v3, s[48:51], 0 offen offset:{j*256}")
        A(f"v_cvt_pk_bf16_f32 v7, v{80+2*j}, v{81+2*j}")
        A(f"buffer_store_dword v7, v3, s[52:55], 0 offen offset:{j*256}")
        A(f"v_add_f32 v8, v{70+2*j}, v{80+2*j}")
        A(f"v_add_f32 v9, v{71+2*j}, v{81+2*j}")
        A(f"v_cvt_pk_bf16_f32 v8, v8, v9")
        A(f"buffer_store_dword v8, v3, s[44:47], 0 offen offset:{j*256}")
    L("L_k3_end")
    A("s_endpgm")
    kdesc(name, 96)

def top8(sc_srd, lds_base, sidx):
    A("v_lshlrev_b32 v1, 5, v0")
    A(f"buffer_load_dwordx4 v[4:7], v1, s[{sc_srd}:{sc_srd+3}], 0 offen")
    A(f"buffer_load_dwordx4 v[8:11], v1, s[{sc_srd}:{sc_srd+3}], 0 offen offset:16")
    A("v_lshlrev_b32 v2, 3, v0")
    A("v_sub_u32 v2, 2047, v2")
    A("v_lshrrev_b32 v3, 6, v0")
    A(f"v_lshlrev_b32 v3, 2, v3")
    A(f"v_add_u32 v3, {lds_base}, v3")
    A(f"v_mov_b32 v13, {lds_base}")
    A("s_waitcnt vmcnt(0)")
    for i in range(8):
        A(f"v_ashrrev_i32 v12, 31, v{4+i}")
        A(f"v_or_b32 v12, 0x80000000, v12")
        A(f"v_xor_b32 v{4+i}, v{4+i}, v12")
        A(f"v_and_b32 v{4+i}, 0xffff0000, v{4+i}")
        A(f"v_subrev_u32 v12, {i}, v2")
        A(f"v_or_b32 v{4+i}, v{4+i}, v12")
    for r in range(8):
        A("v_max3_u32 v12, v4, v5, v6")
        A("v_max3_u32 v12, v12, v7, v8")
        A("v_max3_u32 v12, v12, v9, v10")
        A("v_max_u32 v12, v12, v11")
        A("s_nop 1")
        for mod in ("quad_perm:[1,0,3,2]", "quad_perm:[2,3,0,1]", "row_half_mirror", "row_mirror"):
            A(f"v_max_u32_dpp v12, v12, v12 {mod} row_mask:0xf bank_mask:0xf")
            A("s_nop 1")
        for j in range(4):
            A(f"v_readlane_b32 s{60+j}, v12, {16*j}")
        A("s_max_u32 s60, s60, s61")
        A("s_max_u32 s62, s62, s63")
        A("s_max_u32 s60, s60, s62")
        A("v_mov_b32 v12, s60")
        A(f"ds_write_b32 v3, v12 offset:{(r&1)*16}")
        A("s_waitcnt lgkmcnt(0)")
        A("s_barrier")
        A(f"ds_read_b128 v[16:19], v13 offset:{(r&1)*16}")
        A("s_waitcnt lgkmcnt(0)")
        A("v_max3_u32 v12, v16, v17, v18")
        A("v_max_u32 v12, v12, v19")
        A("s_nop 0")
        A("v_readfirstlane_b32 s60, v12")
        A("s_and_b32 s61, s60, 0x7ff")
        A(f"s_sub_u32 s{sidx+r}, 2047, s61")
        for i in range(8):
            A(f"v_cmp_ne_u32 vcc, s60, v{4+i}")
            A("s_nop 1")
            A(f"v_cndmask_b32 v{4+i}, 0, v{4+i}, vcc")

WS_YP = 52 << 20
def gen_k4():
    name = "ffn1_kernel"
    kstart(name)
    A("s_cmp_ge_u32 s2, 96")
    A("s_cbranch_scc1 L_k4_end")
    A("s_load_dwordx2 s[6:7], s[0:1], 96")
    A("s_load_dwordx4 s[40:43], s[0:1], 56")
    A("s_load_dwordx2 s[44:45], s[0:1], 72")
    A("s_waitcnt lgkmcnt(0)")
    srd(8, 6, S*4, WS_SC)
    srd(12, 6, S*D*2, WS_LN2)
    srd(16, 40, D*F*2)
    srd(20, 42, D*F*2)
    srd(24, 6, 96*8*D*4, WS_YP)
    srd(28, 6, 32, WS_IDX)
    srd(48, 44, D*F*2)
    XB = 64
    RB = XB + 20480
    AB = RB + 32768
    A("v_lshrrev_b32 v21, 3, v0")
    A("v_and_b32 v22, 7, v0")
    A("v_mul_u32_u24 v23, 3072, v21")
    A("v_lshl_add_u32 v23, v22, 2, v23")
    A("s_lshl_b32 s3, s2, 5")
    A("v_add_u32 v23, s3, v23")
    W0 = 40
    for it in range(0 if EXP == 'now' else 20):
        A(f"s_mov_b32 s3, {it*32*3072}")
        A(f"buffer_load_dword v{W0+2*it}, v23, s[16:19], s3 offen")
        A(f"buffer_load_dword v{W0+2*it+1}, v23, s[20:23], s3 offen")
    WD = 80
    A("v_lshlrev_b32 v24, 2, v0")
    A("s_mul_i32 s3, s2, 20480")
    for r in range(16):
        A(f"s_add_u32 s46, s3, {r*1280}")
        A(f"buffer_load_dword v{WD+r}, v24, s[48:51], s46 offen")
    A("v_cmp_gt_u32 vcc, 64, v0")
    A("s_and_saveexec_b64 s[60:61], vcc")
    for r in range(16):
        A(f"s_add_u32 s46, s3, {r*1280}")
        A(f"buffer_load_dword v{WD+16+r}, v24, s[48:51], s46 offen offset:1024")
    A("s_mov_b64 exec, s[60:61]")
    if EXP == 'notop8':
        for t in range(8):
            A(f"s_mov_b32 s{32+t}, {t*100}")
    else:
        top8(8, 0, 32)
    A("s_cmp_lg_u32 s2, 0")
    A("s_cbranch_scc1 L_k4_noidx")
    A("v_cmp_gt_u32 vcc, 8, v0")
    A("s_and_saveexec_b64 s[60:61], vcc")
    A("v_mov_b32 v1, s32")
    for t in range(1, 8):
        A(f"v_cmp_eq_u32 vcc, {t}, v0")
        A(f"v_mov_b32 v2, s{32+t}")
        A("v_cndmask_b32 v1, v1, v2, vcc")
    A("v_lshlrev_b32 v2, 2, v0")
    A("buffer_store_dword v1, v2, s[28:31], 0 offen")
    A("s_mov_b64 exec, s[60:61]")
    L("L_k4_noidx")
    A("v_cmp_gt_u32 vcc, 160, v0")
    A("s_and_saveexec_b64 s[60:61], vcc")
    A("v_lshlrev_b32 v1, 3, v0")
    A("v_lshlrev_b32 v2, 7, v0")
    for t in range(8):
        A(f"s_mul_i32 s3, s{32+t}, 1280")
        A(f"buffer_load_dwordx2 v[{4+2*t}:{5+2*t}], v1, s[12:15], s3 offen")
    A("s_waitcnt vmcnt(0)")
    for t in range(8):
        A(f"v_lshlrev_b32 v25, 16, v{4+2*t}")
        A(f"v_and_b32 v26, 0xffff0000, v{4+2*t}")
        A(f"v_lshlrev_b32 v27, 16, v{5+2*t}")
        A(f"v_and_b32 v28, 0xffff0000, v{5+2*t}")
        for q in range(4):
            A(f"ds_write_b32 v2, v{25+q} offset:{XB + q*32 + t*4}")
    A("s_mov_b64 exec, s[60:61]")
    A("s_waitcnt vmcnt(0) lgkmcnt(0)")
    A("s_barrier")
    A("v_lshlrev_b32 v4, 5, v21")
    ACC = 120
    for i in range(32):
        A(f"v_mov_b32 v{ACC+i}, 0")
    XR = 8
    for it in range(20):
        A(f"ds_read_b128 v[{XR}:{XR+3}], v4 offset:{XB + it*32*32}")
        A(f"ds_read_b128 v[{XR+4}:{XR+7}], v4 offset:{XB + it*32*32 + 16}")
        A(f"s_waitcnt lgkmcnt(0)")
        for mat in range(2):
            w = W0 + 2*it + mat
            A(f"v_lshlrev_b32 v5, 16, v{w}")
            A(f"v_and_b32 v6, 0xffff0000, v{w}")
            for t in range(8):
                A(f"v_fmac_f32 v{ACC+(mat*2+0)*8+t}, v5, v{XR+t}")
                A(f"v_fmac_f32 v{ACC+(mat*2+1)*8+t}, v6, v{XR+t}")
    A("v_lshlrev_b32 v5, 10, v21")
    A("v_lshl_add_u32 v5, v22, 2, v5")
    for i in range(32):
        A(f"ds_write_b32 v5, v{ACC+i} offset:{RB + i*32}")
    A("s_waitcnt lgkmcnt(0)")
    A("s_barrier")
    A("v_cmp_gt_u32 vcc, 128, v0")
    A("s_and_saveexec_b64 s[60:61], vcc")
    A("v_lshrrev_b32 v1, 4, v0")
    A("v_and_b32 v2, 15, v0")
    A("v_and_b32 v3, 1, v2")
    A("v_lshl_add_u32 v3, v3, 3, v1")
    A("v_lshlrev_b32 v3, 5, v3")
    A("v_lshrrev_b32 v4, 1, v2")
    A("v_lshl_add_u32 v3, v4, 2, v3")
    for kq in range(32):
        A(f"ds_read_b32 v{ACC+kq}, v3 offset:{RB + kq*1024}")
        A(f"ds_read_b32 v{8+kq}, v3 offset:{RB + kq*1024 + 16*32}")
    A("s_waitcnt lgkmcnt(0)")
    for kq in range(1, 32):
        A(f"v_add_f32 v{ACC}, v{ACC}, v{ACC+kq}")
        A(f"v_add_f32 v8, v8, v{8+kq}")
    bf16r(ACC, ACC)
    bf16r(8, 8)
    A(f"v_mul_f32 v9, 0xbfb8aa3b, v{ACC}")
    A("v_exp_f32 v9, v9")
    A("s_nop 0")
    A("v_add_f32 v9, 1.0, v9")
    A("v_rcp_f32 v9, v9")
    A("s_nop 0")
    A(f"v_mul_f32 v9, v{ACC}, v9")
    bf16r(9, 9)
    A("v_mul_f32 v9, v9, v8")
    bf16r(9, 9)
    A("v_lshlrev_b32 v4, 5, v2")
    A("v_lshl_add_u32 v4, v1, 2, v4")
    A(f"ds_write_b32 v4, v9 offset:{AB}")
    A("s_mov_b64 exec, s[60:61]")
    A("s_waitcnt lgkmcnt(0)")
    A("s_barrier")
    A("v_mov_b32 v4, 0")
    for i in range(32):
        A(f"v_mov_b32 v{ACC+i}, 0")
    for r in range(16):
        A(f"ds_read_b128 v[{XR}:{XR+3}], v4 offset:{AB + r*32}")
        A(f"ds_read_b128 v[{XR+4}:{XR+7}], v4 offset:{AB + r*32 + 16}")
        A("s_waitcnt lgkmcnt(0)")
        for h in range(2):
            w = WD + 16*h + r
            A(f"v_lshlrev_b32 v5, 16, v{w}")
            A(f"v_and_b32 v6, 0xffff0000, v{w}")
            for t in range(8):
                A(f"v_fmac_f32 v{ACC+(h*2+0)*8+t}, v5, v{XR+t}")
                A(f"v_fmac_f32 v{ACC+(h*2+1)*8+t}, v6, v{XR+t}")
    A("v_lshlrev_b32 v1, 3, v0")
    A("s_mul_i32 s3, s2, 20480")
    for t in range(8):
        A(f"v_mov_b32 v8, v{ACC+t}")
        A(f"v_mov_b32 v9, v{ACC+8+t}")
        A(f"s_add_u32 s46, s3, {t*2560}")
        A(f"buffer_store_dwordx2 v[8:9], v1, s[24:27], s46 offen")
    A("v_cmp_gt_u32 vcc, 64, v0")
    A("s_and_saveexec_b64 s[60:61], vcc")
    for t in range(8):
        A(f"v_mov_b32 v8, v{ACC+16+t}")
        A(f"v_mov_b32 v9, v{ACC+24+t}")
        A(f"s_add_u32 s46, s3, {t*2560}")
        A(f"buffer_store_dwordx2 v[8:9], v1, s[24:27], s46 offen offset:2048")
    A("s_mov_b64 exec, s[60:61]")
    L("L_k4_end")
    A("s_endpgm")
    kdesc(name, 152)
    return AB + 512

def gen_k5():
    name = "ffn2_kernel"
    kstart(name)
    A("s_cmp_ge_u32 s2, 20")
    A("s_cbranch_scc1 L_k5_end")
    A("s_load_dwordx2 s[6:7], s[0:1], 96")
    A("s_load_dwordx2 s[42:43], s[0:1], 80")
    A("s_waitcnt lgkmcnt(0)")
    srd(8, 6, S*4, WS_SC)
    srd(12, 6, S*D*2, WS_LN2)
    srd(20, 42, S*D*2)
    srd(24, 6, 96*8*D*4, WS_YP)
    srd(28, 6, 32, WS_IDX)
    srd(44, 6, S*D*2, WS_H)
    A("s_lshl_b32 s3, s2, 8")
    A("v_add_u32 v1, s3, v0")
    A("v_mul_u32_u24 v2, 0x199a, v1")
    A("v_lshrrev_b32 v2, 22, v2")
    A("v_mul_u32_u24 v3, 640, v2")
    A("v_sub_u32 v3, v1, v3")
    A("v_lshlrev_b32 v4, 2, v2")
    A("buffer_load_dword v5, v4, s[28:31], 0 offen")
    A("v_lshlrev_b32 v1, 2, v1")
    for g in range(96):
        A(f"s_mov_b32 s3, {g*20480}")
        A(f"buffer_load_dword v{16+g}, v1, s[24:27], s3 offen")
    A("s_waitcnt vmcnt(63)")
    A("s_waitcnt vmcnt(0)")
    A("v_lshlrev_b32 v6, 2, v5")
    A("buffer_load_dword v9, v6, s[8:11], 0 offen")
    A("v_mul_u32_u24 v6, 1280, v5")
    A("v_lshl_add_u32 v6, v3, 1, v6")
    A("buffer_load_ushort v10, v6, s[12:15], 0 offen")
    A("buffer_load_ushort v11, v6, s[44:47], 0 offen")
    for g in range(1, 96):
        A(f"v_add_f32 v16, v16, v{16+g}")
    bf16r(8, 16)
    A("s_waitcnt vmcnt(0)")
    A("v_mul_f32 v9, 0xbfb8aa3b, v9")
    A("v_exp_f32 v9, v9")
    A("s_nop 0")
    A("v_add_f32 v9, 1.0, v9")
    A("v_rcp_f32 v9, v9")
    A("s_nop 0")
    bf16r(9, 9)
    A("v_mul_f32 v8, v8, v9")
    bf16r(8, 8)
    A("v_lshlrev_b32 v10, 16, v10")
    A("v_lshlrev_b32 v11, 16, v11")
    A("v_add_f32 v8, v10, v8")
    bf16r(8, 8)
    A("v_add_f32 v8, v11, v8")
    A("v_cvt_pk_bf16_f32 v8, v8, v8")
    A("buffer_store_short v8, v6, s[20:23], 0 offen")
    L("L_k5_end")
    A("s_endpgm")
    kdesc(name, 120)
    return 0

hdr = open('sequential_preLN__spectral_fnet__moe_arch_mod__prompt.s.ref').read().split('\n')
hdr = [l for l in hdr if l.startswith(';') and '@launch' not in l]
lds1 = gen_gemm1()
lds2 = gen_gemm2()
gen_k3()
lds4 = gen_k4()
lds5 = gen_k5()
launch = [
    f"; @launch kernel=gemm1_kernel grid=(256,1,1) block=(256,1,1) lds={lds1}",
    f"; @launch kernel=gemm2_kernel grid=(256,1,1) block=(256,1,1) lds={lds2}",
    "; @launch kernel=ln2_kernel grid=(512,1,1) block=(256,1,1) lds=0",
    f"; @launch kernel=ffn1_kernel grid=(96,1,1) block=(256,1,1) lds={lds4}",
    f"; @launch kernel=ffn2_kernel grid=(20,1,1) block=(256,1,1) lds={lds5}",
]
txt = "\n".join(hdr + launch + ['.amdgcn_target "amdgcn-amd-amdhsa--gfx950"', ".text"] + out +
                ['.section .rodata,"a"'] + descs) + "\n"
open(sys.argv[1] if len(sys.argv) > 1 else 'sequential_preLN__spectral_fnet__moe_arch_mod__prompt.s', 'w').write(txt)
print("ok", len(txt))
```

```python
import sys, os
EXP = os.environ.get('EXP','')

S, D, F = 2048, 640, 1536
WS_LN1 = 0
WS_ABT = 4 << 20
WS_P   = 16 << 20
WS_H   = 40 << 20
WS_LN2 = 44 << 20
WS_SC  = 48 << 20
WS_ACT = (48 << 20) + (64 << 10)
WS_IDX = (48 << 20) + (128 << 10)

out = []
import re as _re
def A(s):
    if s.startswith("buffer_"):
        m = _re.search(r"offset:(\d+)", s)
        assert not m or int(m.group(1)) < 4096, s
    out.append("    " + s)
def L(s):
    out.append(s + ":")
def C(s):
    out.append("    ; " + s)

def srd(dst, ptr, size, off=0):
    if off:
        A(f"s_add_u32 s{dst}, s{ptr}, {off}")
        A(f"s_addc_u32 s{dst+1}, s{ptr+1}, 0")
    else:
        A(f"s_mov_b32 s{dst}, s{ptr}")
        A(f"s_mov_b32 s{dst+1}, s{ptr+1}")
    A(f"s_mov_b32 s{dst+2}, {size}")
    A(f"s_mov_b32 s{dst+3}, 0x00020000")

def kstart(name):
    out.append(f".globl {name}")
    out.append(".p2align 8")
    out.append(f".type {name},@function")
    L(name)

descs = []
def kdesc(name, vgpr, sgpr=102):
    acc = (vgpr + 3) // 4 * 4
    descs.append(f""".p2align 6
.amdhsa_kernel {name}
  .amdhsa_next_free_vgpr {vgpr}
  .amdhsa_next_free_sgpr {sgpr}
  .amdhsa_accum_offset {acc}
  .amdhsa_group_segment_fixed_size 0
  .amdhsa_kernarg_size 104
  .amdhsa_user_sgpr_count 2
  .amdhsa_user_sgpr_kernarg_segment_ptr 1
  .amdhsa_system_sgpr_workgroup_id_x 1
.end_amdhsa_kernel""")

def wave_reduce_add(regs, stmp):
    A("s_nop 1")
    for mod in ("quad_perm:[1,0,3,2]", "quad_perm:[2,3,0,1]", "row_half_mirror", "row_mirror"):
        for r in regs:
            A(f"v_add_f32_dpp v{r}, v{r}, v{r} {mod} row_mask:0xf bank_mask:0xf")
        if len(regs) < 2:
            A("s_nop 1")
        else:
            A("s_nop 0")
    for i, r in enumerate(regs):
        for j in range(4):
            A(f"v_readlane_b32 s{stmp+4*i+j}, v{r}, {16*j}")
    A("s_nop 1")
    for i, r in enumerate(regs):
        A(f"v_mov_b32 v{r}, s{stmp+4*i}")
        for j in range(1, 4):
            A(f"v_add_f32 v{r}, s{stmp+4*i+j}, v{r}")

def bf16r(dst, src, tmp=None):
    A(f"v_cvt_pk_bf16_f32 v{dst}, v{src}, v{src}")
    A(f"v_lshlrev_b32 v{dst}, 16, v{dst}")

def ln_core(X, O, T, stmp):
    A(f"v_add_f32 v{T}, v{X}, v{X+1}")
    for j in range(2, 10):
        A(f"v_add_f32 v{T}, v{T}, v{X+j}")
    wave_reduce_add([T], stmp)
    A(f"v_mul_f32 v{T}, {1.0/640.0!r}, v{T}")
    A(f"v_sub_f32 v{T+1}, v{X}, v{T}")
    A(f"v_mul_f32 v{T+2}, v{T+1}, v{T+1}")
    for j in range(1, 10):
        A(f"v_sub_f32 v{T+1}, v{X+j}, v{T}")
        A(f"v_fmac_f32 v{T+2}, v{T+1}, v{T+1}")
    wave_reduce_add([T+2], stmp)
    A(f"v_mul_f32 v{T+2}, {1.0/640.0!r}, v{T+2}")
    bf16r(T+2, T+2)
    A(f"v_add_f32 v{T+2}, 0x3727c5ac, v{T+2}")
    bf16r(T+2, T+2)
    A(f"v_sqrt_f32 v{T+2}, v{T+2}")
    A("s_nop 0")
    bf16r(T+2, T+2)
    A(f"v_rcp_f32 v{T+2}, v{T+2}")
    bf16r(T, T)
    for j in range(10):
        A(f"v_sub_f32 v{T+1}, v{X+j}, v{T}")
        bf16r(T+1, T+1)
        A(f"v_mul_f32 v{T+1}, v{T+1}, v{T+2}")
        bf16r(O+j, T+1)

def gen_ln1():
    name = "ln1_kernel"
    kstart(name)
    A("s_cmp_ge_u32 s2, 512")
    A("s_cbranch_scc1 L_ln1_end")
    A("s_load_dwordx2 s[4:5], s[0:1], 0")
    A("s_load_dwordx2 s[6:7], s[0:1], 96")
    A("v_lshrrev_b32 v1, 6, v0")
    A("v_and_b32 v2, 63, v0")
    A("s_lshl_b32 s3, s2, 2")
    A("v_add_u32 v1, s3, v1")
    A("v_mul_u32_u24 v1, 1280, v1")
    A("v_lshl_add_u32 v1, v2, 2, v1")
    A("s_waitcnt lgkmcnt(0)")
    srd(8, 4, S*D*2)
    srd(12, 6, S*D*2, WS_LN1)
    for j in range(5):
        A(f"buffer_load_dword v{10+j}, v1, s[8:11], 0 offen offset:{j*256}")
    A("s_waitcnt vmcnt(0)")
    for j in range(5):
        A(f"v_lshlrev_b32 v{20+2*j}, 16, v{10+j}")
        A(f"v_and_b32 v{21+2*j}, 0xffff0000, v{10+j}")
    ln_core(20, 30, 40, 20)
    for j in range(5):
        A(f"v_cvt_pk_bf16_f32 v{10+j}, v{30+2*j}, v{31+2*j}")
    for j in range(5):
        A(f"buffer_store_dword v{10+j}, v1, s[12:15], 0 offen offset:{j*256}")
    L("L_ln1_end")
    A("s_endpgm")
    kdesc(name, 48)

def gen_gemm(name, BM, BN, KIT, nwg, setup, epilogue, strideA, strideB, NST=2, lnfuse=False):
    MT, NT = BM // 32, BN // 32
    CA, CB = BM // 4, BN // 4
    NA, NB = CA // 4, CB // 4
    NL = NA + NB
    STG = (BM + BN) * 256
    vOA, vOB = 1, 2
    vR = 3
    vT = 13
    acc0 = 20
    fA = acc0 + MT * NT * 4
    fB = fA + 2 * MT * 4
    nv = fB + 2 * NT * 4
    vS = nv
    if lnfuse:
        nv += 2 * MT + NT + 16
    kstart(name)
    A(f"s_cmp_ge_u32 s2, {nwg}")
    A(f"s_cbranch_scc1 L_{name}_end")
    if EXP == 'empty':
        A(f"s_branch L_{name}_end")
    setup()
    A(f"v_lshrrev_b32 v{vT}, 6, v0")
    A("s_nop 0")
    A(f"v_readfirstlane_b32 s32, v{vT}")
    A("s_lshl_b32 s33, s32, 10")
    A(f"s_mul_i32 s34, s32, {4*strideA}")
    A(f"s_mul_i32 s35, s32, {4*strideB}")
    A(f"v_bfe_u32 v{vT+1}, v0, 4, 2")
    A(f"v_and_b32 v{vT+2}, 15, v0")
    A(f"v_lshrrev_b32 v{vT+3}, 4, v0")
    A(f"v_xor_b32 v{vT+2}, v{vT+2}, v{vT+3}")
    A(f"v_lshlrev_b32 v{vT+2}, 4, v{vT+2}")
    A(f"s_mov_b32 s20, {strideA}")
    A(f"s_mov_b32 s21, {strideB}")
    A(f"v_mul_lo_u32 v{vOA}, v{vT+1}, s20")
    A(f"v_add_u32 v{vOA}, v{vOA}, v{vT+2}")
    A(f"v_mul_lo_u32 v{vOB}, v{vT+1}, s21")
    A(f"v_add_u32 v{vOB}, v{vOB}, v{vT+2}")
    if 'contig' in EXP:
        A(f"v_and_b32 v{vOA}, 63, v0")
        A(f"v_lshlrev_b32 v{vOA}, 4, v{vOA}")
        A(f"v_mov_b32 v{vOB}, v{vOA}")
    A(f"v_and_b32 v{vT+1}, 15, v0")
    A(f"v_bfe_u32 v{vT+2}, v0, 4, 2")
    A(f"v_xor_b32 v{vT+2}, v{vT+2}, v{vT+1}")
    A(f"v_lshlrev_b32 v{vT+2}, 4, v{vT+2}")
    A(f"v_lshrrev_b32 v{vT+3}, 1, v{vT}")
    A(f"v_mul_u32_u24 v{vT+3}, {BM//2}, v{vT+3}")
    A(f"v_add_u32 v{vT+3}, v{vT+3}, v{vT+1}")
    A(f"v_lshl_add_u32 v{vR}, v{vT+3}, 8, v{vT+2}")
    A(f"v_and_b32 v{vT+3}, 1, v{vT}")
    A(f"v_mul_u32_u24 v{vT+3}, {BN//2}, v{vT+3}")
    A(f"v_add_u32 v{vT+3}, v{vT+3}, v{vT+1}")
    A(f"v_lshl_add_u32 v{vR+1}, v{vT+3}, 8, v{vT+2}")
    A(f"v_add_u32 v{vR+1}, {BM*256}, v{vR+1}")
    for i in range(MT * NT * 4):
        A(f"v_mov_b32 v{acc0+i}, 0")
    if lnfuse:
        for i in range(2 * MT + NT):
            A(f"v_mov_b32 v{vS+i}, 0")
        A("s_mov_b32 s42, 0x3f803f80")
    def gload():
        for i in range(NA):
            A(f"s_add_u32 m0, s36, {i*4096}")
            A(f"s_add_u32 s22, s40, {i*16*strideA}")
            A(f"buffer_load_dwordx4 v{vOA}, s[8:11], s22 offen lds" if 'vreg' not in EXP else f"buffer_load_dwordx4 v[{200+4*i}:{203+4*i}], v{vOA}, s[8:11], s22 offen")
        for i in range(NB):
            A(f"s_add_u32 m0, s36, {BM*256 + i*4096}")
            A(f"s_add_u32 s22, s41, {i*16*strideB}")
            A(f"buffer_load_dwordx4 v{vOB}, s[12:15], s22 offen lds" if 'vreg' not in EXP else f"buffer_load_dwordx4 v[{220+4*i}:{223+4*i}], v{vOB}, s[12:15], s22 offen")
        A("s_add_u32 s38, s38, 256")
        A(f"s_cmp_ge_u32 s38, {KIT*256}")
        A("s_cselect_b32 s38, 0, s38")
        A("s_add_u32 s40, s34, s38")
        A("s_add_u32 s41, s35, s38")
        A(f"s_add_u32 s36, s36, {STG}")
        A(f"s_cmp_ge_u32 s36, {NST*STG}")
        A(f"s_cselect_b32 s22, {NST*STG}, 0")
        A("s_sub_u32 s36, s36, s22")
    def compute():
        for ks in range(4):
            A(f"v_add_u32 v{vR+2+2*ks}, s37, v{vR}")
            A(f"v_add_u32 v{vR+3+2*ks}, s37, v{vR+1}")
            if ks:
                A(f"v_xor_b32 v{vR+2+2*ks}, {ks*64}, v{vR+2+2*ks}")
                A(f"v_xor_b32 v{vR+3+2*ks}, {ks*64}, v{vR+3+2*ks}")
        A(f"s_add_u32 s37, s37, {STG}")
        A(f"s_cmp_ge_u32 s37, {NST*STG}")
        A(f"s_cselect_b32 s22, {NST*STG}, 0")
        A("s_sub_u32 s37, s37, s22")
        def rd(ks):
            fs = ks & 1
            for m in range(MT):
                A(f"ds_read_b128 v[{fA+(fs*MT+m)*4}:{fA+(fs*MT+m)*4+3}], v{vR+2+2*ks} offset:{m*4096}")
            for n in range(NT):
                A(f"ds_read_b128 v[{fB+(fs*NT+n)*4}:{fB+(fs*NT+n)*4+3}], v{vR+3+2*ks} offset:{n*4096}")
        rd(0)
        for ks in range(4):
            fs = ks & 1
            if ks < 3:
                rd(ks + 1)
            A(f"s_waitcnt lgkmcnt({MT+NT if ks < 3 else 0})")
            for m in range(MT):
                for n in range(NT):
                    a = acc0 + (m*NT+n)*4
                    if 'nomfma' in EXP: continue
                    A(f"v_mfma_f32_16x16x32_bf16 v[{a}:{a+3}], v[{fA+(fs*MT+m)*4}:{fA+(fs*MT+m)*4+3}], v[{fB+(fs*NT+n)*4}:{fB+(fs*NT+n)*4+3}], v[{a}:{a+3}]")
            if lnfuse:
                for m in range(MT):
                    for j in range(4):
                        r = fA+(fs*MT+m)*4+j
                        A(f"v_dot2_f32_bf16 v{vS+m}, v{r}, s42, v{vS+m}")
                        A(f"v_dot2_f32_bf16 v{vS+MT+m}, v{r}, v{r}, v{vS+MT+m}")
                for n in range(NT):
                    for j in range(4):
                        r = fB+(fs*NT+n)*4+j
                        A(f"v_dot2_f32_bf16 v{vS+2*MT+n}, v{r}, s42, v{vS+2*MT+n}")
    A("s_mov_b32 s36, s33")
    A("s_mov_b32 s37, 0")
    A("s_mul_i32 s38, s2, 7")
    A("s_lshr_b32 s22, s2, 4")
    A("s_add_u32 s38, s38, s22")
    A(f"s_mul_hi_u32 s22, s38, {(2**32 + KIT - 1)//KIT}")
    A(f"s_mul_i32 s22, s22, {KIT}")
    A("s_sub_u32 s38, s38, s22")
    A("s_lshl_b32 s38, s38, 8")
    A("s_add_u32 s40, s34, s38")
    A("s_add_u32 s41, s35, s38")
    A("s_mov_b32 s39, 0")
    L(f"L_{name}_pro")
    gload()
    A("s_add_u32 s39, s39, 1")
    A(f"s_cmp_lt_u32 s39, {NST-1}")
    A(f"s_cbranch_scc1 L_{name}_pro")
    A("s_mov_b32 s39, 0")
    L(f"L_{name}_loop")
    A(f"s_waitcnt vmcnt({(NST-2) * NL})")
    A("s_barrier")
    gload()
    compute()
    A("s_add_u32 s39, s39, 1")
    A(f"s_cmp_lt_u32 s39, {KIT-(NST-1)}")
    A(f"s_cbranch_scc1 L_{name}_loop")
    A("s_waitcnt vmcnt(0)")
    A("s_barrier")
    L(f"L_{name}_tail")
    compute()
    A("s_add_u32 s39, s39, 1")
    A(f"s_cmp_lt_u32 s39, {KIT}")
    A(f"s_cbranch_scc1 L_{name}_tail")
    A("s_nop 7")
    if lnfuse:
        NSV = 2 * MT + NT
        t0 = (vS + NSV + 3) // 4 * 4
        XO = NST * STG
        A(f"v_lshrrev_b32 v{t0}, 6, v0")
        A(f"v_lshlrev_b32 v{t0}, 12, v{t0}")
        A(f"v_add_u32 v{t0}, {XO}, v{t0}")
        XO = 0
        A(f"v_and_b32 v{t0+1}, 63, v0")
        A(f"v_lshl_add_u32 v{t0+1}, v{t0+1}, 2, v{t0}")
        A(f"v_and_b32 v{t0+2}, 15, v0")
        A(f"v_lshl_add_u32 v{t0+2}, v{t0+2}, 2, v{t0}")
        for i in range(NSV):
            A(f"ds_write_b32 v{t0+1}, v{vS+i} offset:{XO + i*256}")
        A("s_waitcnt lgkmcnt(0)")
        for i in range(NSV):
            for g in range(4):
                A(f"ds_read_b32 v{t0+4+g}, v{t0+2} offset:{XO + i*256 + g*64}")
            A("s_waitcnt lgkmcnt(0)")
            A(f"v_add_f32 v{vS+i}, v{t0+4}, v{t0+5}")
            A(f"v_add_f32 v{t0+6}, v{t0+6}, v{t0+7}")
            A(f"v_add_f32 v{vS+i}, v{vS+i}, v{t0+6}")
        for m in range(MT):
            s1, s2 = vS+m, vS+MT+m
            A(f"v_mul_f32 v{s1}, {1.0/640.0!r}, v{s1}")
            A(f"v_mul_f32 v{s2}, {1.0/640.0!r}, v{s2}")
            A(f"v_fma_f32 v{s2}, -v{s1}, v{s1}, v{s2}")
            A(f"v_max_f32 v{s2}, 0, v{s2}")
            bf16r(s2, s2)
            A(f"v_add_f32 v{s2}, 0x3727c5ac, v{s2}")
            bf16r(s2, s2)
            A(f"v_sqrt_f32 v{s2}, v{s2}")
            A("s_nop 0")
            bf16r(s2, s2)
            A(f"v_rcp_f32 v{s2}, v{s2}")
            bf16r(s1, s1)
            A(f"ds_write_b32 v{t0+2}, v{s1} offset:{XO + 3072 + m*128}")
            A(f"ds_write_b32 v{t0+2}, v{s2} offset:{XO + 3072 + m*128 + 64}")
        A(f"v_bfe_u32 v{t0+3}, v0, 4, 2")
        A(f"v_lshl_add_u32 v{t0+3}, v{t0+3}, 4, v{t0}")
        A("s_waitcnt lgkmcnt(0)")
        for m in range(MT):
            A(f"ds_read_b128 v[{t0+4}:{t0+7}], v{t0+3} offset:{XO + 3072 + m*128}")
            A(f"ds_read_b128 v[{t0+8}:{t0+11}], v{t0+3} offset:{XO + 3072 + m*128 + 64}")
            A("s_waitcnt lgkmcnt(0)")
            for n in range(NT):
                a = acc0 + (m*NT+n)*4
                for r in range(4):
                    A(f"v_fma_f32 v{a+r}, -v{t0+4+r}, v{vS+2*MT+n}, v{a+r}")
                    A(f"v_mul_f32 v{a+r}, v{a+r}, v{t0+8+r}")
    if 'nostore' not in EXP:
        epilogue(MT, NT, acc0, vT)
    L(f"L_{name}_end")
    A("s_endpgm")
    kdesc(name, 256 if 'vreg' in EXP else max(nv, 64))
    return NST * STG + (16384 if lnfuse else 0)

def gen_gemm1():
    def setup():
        A("s_load_dwordx2 s[4:5], s[0:1], 96")
        A("s_load_dwordx2 s[6:7], s[0:1], 0")
        A("s_load_dwordx4 s[24:27], s[0:1], 24")
        A("s_and_b32 s16, s2, 7")
        A("s_lshr_b32 s17, s2, 3")
        A("s_waitcnt lgkmcnt(0)")
        A("s_mul_i32 s18, s17, 81920")
        A("s_add_u32 s8, s6, s18")
        A("s_addc_u32 s9, s7, 0")
        A(f"s_sub_u32 s10, {S*D*2}, s18")
        A("s_mov_b32 s11, 0x00020000")
        A("s_cmp_lt_u32 s16, 4")
        A("s_cselect_b32 s12, s24, s26")
        A("s_cselect_b32 s13, s25, s27")
        A("s_and_b32 s18, s16, 3")
        A("s_mul_i32 s18, s18, 204800")
        A("s_add_u32 s12, s12, s18")
        A("s_addc_u32 s13, s13, 0")
        A(f"s_sub_u32 s14, {D*D*2}, s18")
        A("s_mov_b32 s15, 0x00020000")
        srd(28, 4, 1280*2048*2, WS_ABT)
    def epilogue(MT, NT, acc0, vT):
        A(f"v_lshrrev_b32 v{vT}, 6, v0")
        A(f"v_and_b32 v{vT+1}, 15, v0")
        A(f"v_and_b32 v{vT+2}, 1, v{vT}")
        A(f"v_mul_u32_u24 v{vT+2}, 80, v{vT+2}")
        A(f"v_add_u32 v{vT+1}, v{vT+1}, v{vT+2}")
        A("s_mul_i32 s18, s16, 160")
        A(f"v_add_u32 v{vT+1}, s18, v{vT+1}")
        A(f"v_lshlrev_b32 v{vT+1}, 12, v{vT+1}")
        A(f"v_lshrrev_b32 v{vT+2}, 1, v{vT}")
        A(f"v_lshlrev_b32 v{vT+2}, 5, v{vT+2}")
        A(f"v_bfe_u32 v{vT+3}, v0, 4, 2")
        A(f"v_lshl_add_u32 v{vT+2}, v{vT+3}, 2, v{vT+2}")
        A("s_lshl_b32 s18, s17, 6")
        A(f"v_add_u32 v{vT+2}, s18, v{vT+2}")
        A(f"v_lshl_add_u32 v{vT+1}, v{vT+2}, 1, v{vT+1}")
        for m in range(MT):
            for n in range(NT):
                a = acc0 + (m*NT+n)*4
                A(f"v_cvt_pk_bf16_f32 v{a}, v{a}, v{a+1}")
                A(f"v_cvt_pk_bf16_f32 v{a+1}, v{a+2}, v{a+3}")
                A(f"s_mov_b32 s18, {n*16*4096 + m*32}")
                A(f"buffer_store_dwordx2 v[{a}:{a+1}], v{vT+1}, s[28:31], s18 offen")
    return gen_gemm("gemm1_kernel", 64, 160, 5, 256, setup, epilogue, 1280, 1280, lnfuse=True)

def gen_gemm2():
    def setup():
        A("s_load_dwordx2 s[4:5], s[0:1], 96")
        A("s_load_dwordx4 s[24:27], s[0:1], 8")
        A("s_and_b32 s16, s2, 3")
        A("s_bfe_u32 s17, s2, 0x20002")
        A("s_lshr_b32 s19, s2, 4")
        A("s_waitcnt lgkmcnt(0)")
        A("s_lshr_b32 s18, s16, 1")
        A("s_mul_i32 s18, s18, 640")
        A("s_mul_i32 s20, s17, 160")
        A("s_add_u32 s18, s18, s20")
        A("s_lshl_b32 s18, s18, 12")
        A("s_and_b32 s20, s16, 1")
        A("s_lshl_b32 s21, s20, 11")
        A("s_add_u32 s18, s18, s21")
        A(f"s_add_u32 s20, s18, {WS_ABT}")
        A("s_add_u32 s8, s4, s20")
        A("s_addc_u32 s9, s5, 0")
        A(f"s_sub_u32 s10, {1280*2048*2}, s18")
        A("s_mov_b32 s11, 0x00020000")
        A("s_cmp_lt_u32 s16, 2")
        A("s_cselect_b32 s12, s24, s26")
        A("s_cselect_b32 s13, s25, s27")
        A("s_lshl_b32 s18, s19, 19")
        A("s_add_u32 s18, s18, s21")
        A("s_add_u32 s12, s12, s18")
        A("s_addc_u32 s13, s13, 0")
        A(f"s_sub_u32 s14, {S*S*2}, s18")
        A("s_mov_b32 s15, 0x00020000")
        srd(28, 4, 4*S*D*4, WS_P)
    def epilogue(MT, NT, acc0, vT):
        A(f"v_lshrrev_b32 v{vT}, 6, v0")
        A(f"v_and_b32 v{vT+1}, 15, v0")
        A(f"v_and_b32 v{vT+2}, 1, v{vT}")
        A(f"v_lshl_add_u32 v{vT+1}, v{vT+2}, 6, v{vT+1}")
        A("s_lshl_b32 s18, s19, 7")
        A("s_lshl_b32 s20, s16, 11")
        A("s_add_u32 s18, s18, s20")
        A(f"v_add_u32 v{vT+1}, s18, v{vT+1}")
        A(f"v_mul_u32_u24 v{vT+1}, 2560, v{vT+1}")
        A(f"v_lshrrev_b32 v{vT+2}, 1, v{vT}")
        A(f"v_mul_u32_u24 v{vT+2}, 80, v{vT+2}")
        A(f"v_bfe_u32 v{vT+3}, v0, 4, 2")
        A(f"v_lshl_add_u32 v{vT+2}, v{vT+3}, 2, v{vT+2}")
        A("s_mul_i32 s18, s17, 160")
        A(f"v_add_u32 v{vT+2}, s18, v{vT+2}")
        A(f"v_lshl_add_u32 v{vT+1}, v{vT+2}, 2, v{vT+1}")
        for m in range(MT):
            for n in range(NT):
                a = acc0 + (m*NT+n)*4
                A(f"s_mov_b32 s18, {n*16*2560 + m*64}")
                A(f"buffer_store_dwordx4 v[{a}:{a+3}], v{vT+1}, s[28:31], s18 offen")
    return gen_gemm("gemm2_kernel", 160, 128, 8, 256, setup, epilogue, 4096, 4096)

def gen_k3():
    name = "ln2_kernel"
    kstart(name)
    A("s_cmp_ge_u32 s2, 512")
    A("s_cbranch_scc1 L_k3_end")
    A("s_load_dwordx2 s[4:5], s[0:1], 0")
    A("s_load_dwordx2 s[6:7], s[0:1], 96")
    A("s_load_dwordx2 s[40:41], s[0:1], 48")
    A("s_load_dwordx2 s[42:43], s[0:1], 80")
    A("v_lshrrev_b32 v1, 6, v0")
    A("v_and_b32 v2, 63, v0")
    A("s_lshl_b32 s3, s2, 2")
    A("v_add_u32 v1, s3, v1")
    A("v_mul_u32_u24 v3, 1280, v1")
    A("v_lshl_add_u32 v3, v2, 2, v3")
    A("v_lshlrev_b32 v4, 1, v3")
    A("v_lshlrev_b32 v5, 2, v2")
    A("s_waitcnt lgkmcnt(0)")
    srd(8, 4, S*D*2)
    srd(12, 6, 4*S*D*4, WS_P)
    srd(16, 40, D*2)
    srd(44, 42, S*D*2)
    srd(48, 6, S*D*2, WS_H)
    srd(52, 6, S*D*2, WS_LN2)
    srd(56, 6, S*4, WS_SC)
    for j in range(5):
        A(f"buffer_load_dword v{10+j}, v3, s[8:11], 0 offen offset:{j*256}")
    for c in range(4):
        A(f"s_mov_b32 s3, {c*S*D*4}")
        for j in range(5):
            A(f"buffer_load_dwordx2 v[{20+(c*5+j)*2}:{21+(c*5+j)*2}], v4, s[12:15], s3 offen offset:{j*512}")
    for j in range(5):
        A(f"buffer_load_dword v{60+j}, v5, s[16:19], 0 offen offset:{j*256}")
    A("s_waitcnt vmcnt(0)")
    for j in range(5):
        for q in range(2):
            p0, p1, p2, p3 = [20+(c*5+j)*2+q for c in range(4)]
            A(f"v_add_f32 v6, v{p0}, v{p1}")
            bf16r(6, 6)
            A(f"v_add_f32 v7, v{p2}, v{p3}")
            bf16r(7, 7)
            A("v_sub_f32 v6, v6, v7")
            bf16r(6, 6)
            if q == 0:
                A(f"v_lshlrev_b32 v7, 16, v{10+j}")
            else:
                A(f"v_and_b32 v7, 0xffff0000, v{10+j}")
            A("v_add_f32 v6, v7, v6")
            bf16r(70+2*j+q, 6)
    ln_core(70, 80, 90, 20)
    for j in range(5):
        A(f"v_lshlrev_b32 v6, 16, v{60+j}")
        A(f"v_and_b32 v7, 0xffff0000, v{60+j}")
        if j == 0:
            A("v_mul_f32 v8, v6, v80")
        else:
            A(f"v_fmac_f32 v8, v6, v{80+2*j}")
        A(f"v_fmac_f32 v8, v7, v{81+2*j}")
    wave_reduce_add([8], 20)
    bf16r(8, 8)
    A("v_lshlrev_b32 v9, 2, v1")
    A("v_cmp_eq_u32 vcc, 0, v2")
    A("s_and_saveexec_b64 s[60:61], vcc")
    A("buffer_store_dword v8, v9, s[56:59], 0 offen")
    A("s_mov_b64 exec, s[60:61]")
    for j in range(5):
        A(f"v_cvt_pk_bf16_f32 v6, v{70+2*j}, v{71+2*j}")
        A(f"buffer_store_dword v6, v3, s[48:51], 0 offen offset:{j*256}")
        A(f"v_cvt_pk_bf16_f32 v7, v{80+2*j}, v{81+2*j}")
        A(f"buffer_store_dword v7, v3, s[52:55], 0 offen offset:{j*256}")
        A(f"v_add_f32 v8, v{70+2*j}, v{80+2*j}")
        A(f"v_add_f32 v9, v{71+2*j}, v{81+2*j}")
        A(f"v_cvt_pk_bf16_f32 v8, v8, v9")
        A(f"buffer_store_dword v8, v3, s[44:47], 0 offen offset:{j*256}")
    L("L_k3_end")
    A("s_endpgm")
    kdesc(name, 96)

def top8(sc_srd, lds_base, sidx):
    A("v_lshlrev_b32 v1, 5, v0")
    A(f"buffer_load_dwordx4 v[4:7], v1, s[{sc_srd}:{sc_srd+3}], 0 offen")
    A(f"buffer_load_dwordx4 v[8:11], v1, s[{sc_srd}:{sc_srd+3}], 0 offen offset:16")
    A("v_lshlrev_b32 v2, 3, v0")
    A("v_sub_u32 v2, 2047, v2")
    A("v_lshrrev_b32 v3, 6, v0")
    A(f"v_lshlrev_b32 v3, 2, v3")
    A(f"v_add_u32 v3, {lds_base}, v3")
    A(f"v_mov_b32 v13, {lds_base}")
    A("s_waitcnt vmcnt(0)")
    for i in range(8):
        A(f"v_ashrrev_i32 v12, 31, v{4+i}")
        A(f"v_or_b32 v12, 0x80000000, v12")
        A(f"v_xor_b32 v{4+i}, v{4+i}, v12")
        A(f"v_and_b32 v{4+i}, 0xffff0000, v{4+i}")
        A(f"v_subrev_u32 v12, {i}, v2")
        A(f"v_or_b32 v{4+i}, v{4+i}, v12")
    for r in range(8):
        A("v_max3_u32 v12, v4, v5, v6")
        A("v_max3_u32 v12, v12, v7, v8")
        A("v_max3_u32 v12, v12, v9, v10")
        A("v_max_u32 v12, v12, v11")
        A("s_nop 1")
        for mod in ("quad_perm:[1,0,3,2]", "quad_perm:[2,3,0,1]", "row_half_mirror", "row_mirror"):
            A(f"v_max_u32_dpp v12, v12, v12 {mod} row_mask:0xf bank_mask:0xf")
            A("s_nop 1")
        for j in range(4):
            A(f"v_readlane_b32 s{60+j}, v12, {16*j}")
        A("s_max_u32 s60, s60, s61")
        A("s_max_u32 s62, s62, s63")
        A("s_max_u32 s60, s60, s62")
        A("v_mov_b32 v12, s60")
        A(f"ds_write_b32 v3, v12 offset:{(r&1)*16}")
        A("s_waitcnt lgkmcnt(0)")
        A("s_barrier")
        A(f"ds_read_b128 v[16:19], v13 offset:{(r&1)*16}")
        A("s_waitcnt lgkmcnt(0)")
        A("v_max3_u32 v12, v16, v17, v18")
        A("v_max_u32 v12, v12, v19")
        A("s_nop 0")
        A("v_readfirstlane_b32 s60, v12")
        A("s_and_b32 s61, s60, 0x7ff")
        A(f"s_sub_u32 s{sidx+r}, 2047, s61")
        for i in range(8):
            A(f"v_cmp_ne_u32 vcc, s60, v{4+i}")
            A("s_nop 1")
            A(f"v_cndmask_b32 v{4+i}, 0, v{4+i}, vcc")

WS_YP = 52 << 20
def gen_k4():
    name = "ffn1_kernel"
    kstart(name)
    A("s_cmp_ge_u32 s2, 96")
    A("s_cbranch_scc1 L_k4_end")
    A("s_load_dwordx2 s[6:7], s[0:1], 96")
    A("s_load_dwordx4 s[40:43], s[0:1], 56")
    A("s_load_dwordx2 s[44:45], s[0:1], 72")
    A("v_lshrrev_b32 v1, 6, v0")
    A("v_and_b32 v22, 15, v0")
    A("v_bfe_u32 v23, v0, 4, 2")
    A("v_readfirstlane_b32 s47, v1")
    A("s_waitcnt lgkmcnt(0)")
    srd(8, 6, S*4, WS_SC)
    srd(12, 6, S*D*2, WS_LN2)
    srd(16, 40, D*F*2)
    srd(20, 42, D*F*2)
    srd(24, 6, 96*8*D*4, WS_YP)
    srd(28, 6, 32, WS_IDX)
    srd(48, 44, D*F*2)
    RB = 64
    AB = RB + 8192
    A("v_mul_u32_u24 v24, 24576, v23")
    A("v_lshl_add_u32 v24, v22, 1, v24")
    A("s_mul_i32 s52, s47, 491520")
    A("s_lshl_b32 s3, s2, 5")
    A("s_add_u32 s52, s52, s3")
    for ks in range(5):
        for j in range(8):
            A(f"s_add_u32 s3, s52, {(32*ks+j)*3072}")
            A(f"buffer_load_ushort v{128+ks*8+j}, v24, s[16:19], s3 offen")
            A(f"buffer_load_ushort v{168+ks*8+j}, v24, s[20:23], s3 offen")
    A("v_mul_u32_u24 v25, 5120, v23")
    A("v_lshl_add_u32 v25, v22, 1, v25")
    A("s_mul_i32 s53, s2, 20480")
    A("s_mul_i32 s3, s47, 320")
    A("s_add_u32 s53, s53, s3")
    for nt in range(10):
        for j in range(4):
            A(f"s_add_u32 s3, s53, {j*1280 + nt*32}")
            A(f"buffer_load_ushort v{208+nt*4+j}, v25, s[48:51], s3 offen")
    top8(8, 0, 32)
    A("v_mov_b32 v20, s32")
    for t in range(1, 8):
        A(f"v_cmp_eq_u32 vcc, {t}, v22")
        A(f"v_mov_b32 v2, s{32+t}")
        A("v_cndmask_b32 v20, v20, v2, vcc")
    A("s_cmp_lg_u32 s2, 0")
    A("s_cbranch_scc1 L_k4_noidx")
    A("v_cmp_gt_u32 vcc, 8, v0")
    A("s_and_saveexec_b64 s[60:61], vcc")
    A("v_lshlrev_b32 v2, 2, v0")
    A("buffer_store_dword v20, v2, s[28:31], 0 offen")
    A("s_mov_b64 exec, s[60:61]")
    L("L_k4_noidx")
    A("v_mul_u32_u24 v21, 1280, v20")
    A("v_lshl_add_u32 v21, v23, 4, v21")
    A("s_mul_i32 s3, s47, 320")
    for ks in range(5):
        A(f"buffer_load_dwordx4 v[{100+ks*4}:{103+ks*4}], v21, s[12:15], s3 offen offset:{ks*64}")
    A("s_waitcnt vmcnt(0)")
    for i in range(20):
        A(f"v_lshl_or_b32 v{40+i}, v{129+2*i}, 16, v{128+2*i}")
        A(f"v_lshl_or_b32 v{60+i}, v{169+2*i}, 16, v{168+2*i}")
        A(f"v_lshl_or_b32 v{80+i}, v{209+2*i}, 16, v{208+2*i}")
    A("s_nop 1")
    for ks in range(5):
        c0 = "0" if ks == 0 else "v[120:123]"
        c1 = "0" if ks == 0 else "v[124:127]"
        A(f"v_mfma_f32_16x16x32_bf16 v[120:123], v[{100+ks*4}:{103+ks*4}], v[{40+ks*4}:{43+ks*4}], {c0}")
        A(f"v_mfma_f32_16x16x32_bf16 v[124:127], v[{100+ks*4}:{103+ks*4}], v[{60+ks*4}:{63+ks*4}], {c1}")
    A("v_and_b32 v1, 63, v0")
    A("v_lshlrev_b32 v1, 5, v1")
    A("s_lshl_b32 s3, s47, 11")
    A("v_add_u32 v2, s3, v1")
    A("s_nop 7")
    A(f"ds_write_b128 v2, v[120:123] offset:{RB}")
    A(f"ds_write_b128 v2, v[124:127] offset:{RB+16}")
    A("s_waitcnt lgkmcnt(0)")
    A("s_barrier")
    for w in range(4):
        A(f"ds_read_b128 v[{40+w*8}:{43+w*8}], v1 offset:{RB + w*2048}")
        A(f"ds_read_b128 v[{44+w*8}:{47+w*8}], v1 offset:{RB + w*2048 + 16}")
    A("s_waitcnt lgkmcnt(0)")
    for i in range(8):
        A(f"v_add_f32 v{40+i}, v{40+i}, v{48+i}")
        A(f"v_add_f32 v{56+i}, v{56+i}, v{64+i}")
        A(f"v_add_f32 v{40+i}, v{40+i}, v{56+i}")
    A("s_lshl_b32 s3, s47, 9")
    A("v_lshlrev_b32 v2, 7, v23")
    A("v_lshl_add_u32 v2, v22, 1, v2")
    A("v_add_u32 v2, s3, v2")
    for r in range(4):
        g, u = 40 + r, 44 + r
        bf16r(g, g)
        bf16r(u, u)
        A(f"v_mul_f32 v9, 0xbfb8aa3b, v{g}")
        A("v_exp_f32 v9, v9")
        A("s_nop 0")
        A("v_add_f32 v9, 1.0, v9")
        A("v_rcp_f32 v9, v9")
        A("s_nop 0")
        A(f"v_mul_f32 v9, v{g}, v9")
        bf16r(9, 9)
        A(f"v_mul_f32 v9, v9, v{u}")
        A("v_cvt_pk_bf16_f32 v9, v9, v9")
        A(f"ds_write_b16 v2, v9 offset:{AB + r*32}")
    A("v_lshlrev_b32 v3, 5, v22")
    A("v_lshl_add_u32 v3, v23, 3, v3")
    A("v_add_u32 v3, s3, v3")
    A("s_waitcnt lgkmcnt(0)")
    A(f"ds_read_b64 v[10:11], v3 offset:{AB}")
    A("v_mul_u32_u24 v4, 2560, v22")
    A("v_lshl_add_u32 v4, v23, 4, v4")
    A("s_mul_i32 s53, s2, 20480")
    A("s_mul_i32 s3, s47, 640")
    A("s_add_u32 s53, s53, s3")
    A("s_waitcnt lgkmcnt(0)")
    for nt in range(10):
        A(f"v_mfma_f32_16x16x16_bf16 v[{40+nt*4}:{43+nt*4}], v[{80+nt*2}:{81+nt*2}], v[10:11], 0")
    A("v_cmp_gt_u32 vcc, 8, v22")
    A("s_and_saveexec_b64 s[60:61], vcc")
    A("s_nop 7")
    for nt in range(10):
        A(f"s_add_u32 s3, s53, {nt*64}")
        A(f"buffer_store_dwordx4 v[{40+nt*4}:{43+nt*4}], v4, s[24:27], s3 offen")
    A("s_mov_b64 exec, s[60:61]")
    L("L_k4_end")
    A("s_endpgm")
    kdesc(name, 248)
    return AB + 2048

def gen_k5():
    name = "ffn2_kernel"
    kstart(name)
    A("s_cmp_ge_u32 s2, 20")
    A("s_cbranch_scc1 L_k5_end")
    A("s_load_dwordx2 s[6:7], s[0:1], 96")
    A("s_load_dwordx2 s[42:43], s[0:1], 80")
    A("s_waitcnt lgkmcnt(0)")
    srd(8, 6, S*4, WS_SC)
    srd(12, 6, S*D*2, WS_LN2)
    srd(20, 42, S*D*2)
    srd(24, 6, 96*8*D*4, WS_YP)
    srd(28, 6, 32, WS_IDX)
    srd(44, 6, S*D*2, WS_H)
    A("s_lshl_b32 s3, s2, 8")
    A("v_add_u32 v1, s3, v0")
    A("v_mul_u32_u24 v2, 0x199a, v1")
    A("v_lshrrev_b32 v2, 22, v2")
    A("v_mul_u32_u24 v3, 640, v2")
    A("v_sub_u32 v3, v1, v3")
    A("v_lshlrev_b32 v4, 2, v2")
    A("buffer_load_dword v5, v4, s[28:31], 0 offen")
    A("v_lshlrev_b32 v1, 2, v1")
    for g in range(96):
        A(f"s_mov_b32 s3, {g*20480}")
        A(f"buffer_load_dword v{16+g}, v1, s[24:27], s3 offen")
    A("s_waitcnt vmcnt(63)")
    A("s_waitcnt vmcnt(0)")
    A("v_lshlrev_b32 v6, 2, v5")
    A("buffer_load_dword v9, v6, s[8:11], 0 offen")
    A("v_mul_u32_u24 v6, 1280, v5")
    A("v_lshl_add_u32 v6, v3, 1, v6")
    A("buffer_load_ushort v10, v6, s[12:15], 0 offen")
    A("buffer_load_ushort v11, v6, s[44:47], 0 offen")
    for g in range(1, 96):
        A(f"v_add_f32 v16, v16, v{16+g}")
    bf16r(8, 16)
    A("s_waitcnt vmcnt(0)")
    A("v_mul_f32 v9, 0xbfb8aa3b, v9")
    A("v_exp_f32 v9, v9")
    A("s_nop 0")
    A("v_add_f32 v9, 1.0, v9")
    A("v_rcp_f32 v9, v9")
    A("s_nop 0")
    bf16r(9, 9)
    A("v_mul_f32 v8, v8, v9")
    bf16r(8, 8)
    A("v_lshlrev_b32 v10, 16, v10")
    A("v_lshlrev_b32 v11, 16, v11")
    A("v_add_f32 v8, v10, v8")
    bf16r(8, 8)
    A("v_add_f32 v8, v11, v8")
    A("v_cvt_pk_bf16_f32 v8, v8, v8")
    A("buffer_store_short v8, v6, s[20:23], 0 offen")
    L("L_k5_end")
    A("s_endpgm")
    kdesc(name, 120)
    return 0

hdr = open('sequential_preLN__spectral_fnet__moe_arch_mod__prompt.s.ref').read().split('\n')
hdr = [l for l in hdr if l.startswith(';') and '@launch' not in l]
lds1 = gen_gemm1()
lds2 = gen_gemm2()
gen_k3()
lds4 = gen_k4()
lds5 = gen_k5()
launch = [
    f"; @launch kernel=gemm1_kernel grid=(256,1,1) block=(256,1,1) lds={lds1}",
    f"; @launch kernel=gemm2_kernel grid=(256,1,1) block=(256,1,1) lds={lds2}",
    "; @launch kernel=ln2_kernel grid=(512,1,1) block=(256,1,1) lds=0",
    f"; @launch kernel=ffn1_kernel grid=(96,1,1) block=(256,1,1) lds={lds4}",
    f"; @launch kernel=ffn2_kernel grid=(20,1,1) block=(256,1,1) lds={lds5}",
]
txt = "\n".join(hdr + launch + ['.amdgcn_target "amdgcn-amd-amdhsa--gfx950"', ".text"] + out +
                ['.section .rodata,"a"'] + descs) + "\n"
open(sys.argv[1] if len(sys.argv) > 1 else 'sequential_preLN__spectral_fnet__moe_arch_mod__prompt.s', 'w').write(txt)
print("ok", len(txt))
```

```python
import sys, os
EXP = os.environ.get('EXP','')

S, D, F = 2048, 640, 1536
WS_LN1 = 0
WS_ABT = 4 << 20
WS_P   = 16 << 20
WS_H   = 40 << 20
WS_LN2 = 44 << 20
WS_SC  = 48 << 20
WS_ACT = (48 << 20) + (64 << 10)
WS_IDX = (48 << 20) + (128 << 10)

out = []
import re as _re
def A(s):
    if s.startswith("buffer_"):
        m = _re.search(r"offset:(\d+)", s)
        assert not m or int(m.group(1)) < 4096, s
    out.append("    " + s)
def L(s):
    out.append(s + ":")
def C(s):
    out.append("    ; " + s)

def srd(dst, ptr, size, off=0):
    if off:
        A(f"s_add_u32 s{dst}, s{ptr}, {off}")
        A(f"s_addc_u32 s{dst+1}, s{ptr+1}, 0")
    else:
        A(f"s_mov_b32 s{dst}, s{ptr}")
        A(f"s_mov_b32 s{dst+1}, s{ptr+1}")
    A(f"s_mov_b32 s{dst+2}, {size}")
    A(f"s_mov_b32 s{dst+3}, 0x00020000")

def kstart(name):
    out.append(f".globl {name}")
    out.append(".p2align 8")
    out.append(f".type {name},@function")
    L(name)

descs = []
def kdesc(name, vgpr, sgpr=102):
    acc = (vgpr + 3) // 4 * 4
    descs.append(f""".p2align 6
.amdhsa_kernel {name}
  .amdhsa_next_free_vgpr {vgpr}
  .amdhsa_next_free_sgpr {sgpr}
  .amdhsa_accum_offset {acc}
  .amdhsa_group_segment_fixed_size 0
  .amdhsa_kernarg_size 104
  .amdhsa_user_sgpr_count 2
  .amdhsa_user_sgpr_kernarg_segment_ptr 1
  .amdhsa_system_sgpr_workgroup_id_x 1
.end_amdhsa_kernel""")

def wave_reduce_add(regs, stmp):
    A("s_nop 1")
    for mod in ("quad_perm:[1,0,3,2]", "quad_perm:[2,3,0,1]", "row_half_mirror", "row_mirror"):
        for r in regs:
            A(f"v_add_f32_dpp v{r}, v{r}, v{r} {mod} row_mask:0xf bank_mask:0xf")
        if len(regs) < 2:
            A("s_nop 1")
        else:
            A("s_nop 0")
    for i, r in enumerate(regs):
        for j in range(4):
            A(f"v_readlane_b32 s{stmp+4*i+j}, v{r}, {16*j}")
    A("s_nop 1")
    for i, r in enumerate(regs):
        A(f"v_mov_b32 v{r}, s{stmp+4*i}")
        for j in range(1, 4):
            A(f"v_add_f32 v{r}, s{stmp+4*i+j}, v{r}")

def bf16r(dst, src, tmp=None):
    A(f"v_cvt_pk_bf16_f32 v{dst}, v{src}, v{src}")
    A(f"v_lshlrev_b32 v{dst}, 16, v{dst}")

def ln_core(X, O, T, stmp):
    A(f"v_add_f32 v{T}, v{X}, v{X+1}")
    for j in range(2, 10):
        A(f"v_add_f32 v{T}, v{T}, v{X+j}")
    wave_reduce_add([T], stmp)
    A(f"v_mul_f32 v{T}, {1.0/640.0!r}, v{T}")
    A(f"v_sub_f32 v{T+1}, v{X}, v{T}")
    A(f"v_mul_f32 v{T+2}, v{T+1}, v{T+1}")
    for j in range(1, 10):
        A(f"v_sub_f32 v{T+1}, v{X+j}, v{T}")
        A(f"v_fmac_f32 v{T+2}, v{T+1}, v{T+1}")
    wave_reduce_add([T+2], stmp)
    A(f"v_mul_f32 v{T+2}, {1.0/640.0!r}, v{T+2}")
    bf16r(T+2, T+2)
    A(f"v_add_f32 v{T+2}, 0x3727c5ac, v{T+2}")
    bf16r(T+2, T+2)
    A(f"v_sqrt_f32 v{T+2}, v{T+2}")
    A("s_nop 0")
    bf16r(T+2, T+2)
    A(f"v_rcp_f32 v{T+2}, v{T+2}")
    bf16r(T, T)
    for j in range(10):
        A(f"v_sub_f32 v{T+1}, v{X+j}, v{T}")
        bf16r(T+1, T+1)
        A(f"v_mul_f32 v{T+1}, v{T+1}, v{T+2}")
        bf16r(O+j, T+1)

def gen_ln1():
    name = "ln1_kernel"
    kstart(name)
    A("s_cmp_ge_u32 s2, 512")
    A("s_cbranch_scc1 L_ln1_end")
    A("s_load_dwordx2 s[4:5], s[0:1], 0")
    A("s_load_dwordx2 s[6:7], s[0:1], 96")
    A("v_lshrrev_b32 v1, 6, v0")
    A("v_and_b32 v2, 63, v0")
    A("s_lshl_b32 s3, s2, 2")
    A("v_add_u32 v1, s3, v1")
    A("v_mul_u32_u24 v1, 1280, v1")
    A("v_lshl_add_u32 v1, v2, 2, v1")
    A("s_waitcnt lgkmcnt(0)")
    srd(8, 4, S*D*2)
    srd(12, 6, S*D*2, WS_LN1)
    for j in range(5):
        A(f"buffer_load_dword v{10+j}, v1, s[8:11], 0 offen offset:{j*256}")
    A("s_waitcnt vmcnt(0)")
    for j in range(5):
        A(f"v_lshlrev_b32 v{20+2*j}, 16, v{10+j}")
        A(f"v_and_b32 v{21+2*j}, 0xffff0000, v{10+j}")
    ln_core(20, 30, 40, 20)
    for j in range(5):
        A(f"v_cvt_pk_bf16_f32 v{10+j}, v{30+2*j}, v{31+2*j}")
    for j in range(5):
        A(f"buffer_store_dword v{10+j}, v1, s[12:15], 0 offen offset:{j*256}")
    L("L_ln1_end")
    A("s_endpgm")
    kdesc(name, 48)

def gen_gemm(name, BM, BN, KIT, nwg, setup, epilogue, strideA, strideB, NST=2, lnfuse=False):
    MT, NT = BM // 32, BN // 32
    CA, CB = BM // 4, BN // 4
    NA, NB = CA // 4, CB // 4
    NL = NA + NB
    STG = (BM + BN) * 256
    vOA, vOB = 1, 2
    vR = 3
    vT = 13
    acc0 = 20
    fA = acc0 + MT * NT * 4
    fB = fA + 2 * MT * 4
    nv = fB + 2 * NT * 4
    vS = nv
    if lnfuse:
        nv += 2 * MT + NT + 16
    kstart(name)
    A(f"s_cmp_ge_u32 s2, {nwg}")
    A(f"s_cbranch_scc1 L_{name}_end")
    if EXP == 'empty':
        A(f"s_branch L_{name}_end")
    setup()
    A(f"v_lshrrev_b32 v{vT}, 6, v0")
    A("s_nop 0")
    A(f"v_readfirstlane_b32 s32, v{vT}")
    A("s_lshl_b32 s33, s32, 10")
    A(f"s_mul_i32 s34, s32, {4*strideA}")
    A(f"s_mul_i32 s35, s32, {4*strideB}")
    A(f"v_bfe_u32 v{vT+1}, v0, 4, 2")
    A(f"v_and_b32 v{vT+2}, 15, v0")
    A(f"v_lshrrev_b32 v{vT+3}, 4, v0")
    A(f"v_xor_b32 v{vT+2}, v{vT+2}, v{vT+3}")
    A(f"v_lshlrev_b32 v{vT+2}, 4, v{vT+2}")
    A(f"s_mov_b32 s20, {strideA}")
    A(f"s_mov_b32 s21, {strideB}")
    A(f"v_mul_lo_u32 v{vOA}, v{vT+1}, s20")
    A(f"v_add_u32 v{vOA}, v{vOA}, v{vT+2}")
    A(f"v_mul_lo_u32 v{vOB}, v{vT+1}, s21")
    A(f"v_add_u32 v{vOB}, v{vOB}, v{vT+2}")
    if 'contig' in EXP:
        A(f"v_and_b32 v{vOA}, 63, v0")
        A(f"v_lshlrev_b32 v{vOA}, 4, v{vOA}")
        A(f"v_mov_b32 v{vOB}, v{vOA}")
    A(f"v_and_b32 v{vT+1}, 15, v0")
    A(f"v_bfe_u32 v{vT+2}, v0, 4, 2")
    A(f"v_xor_b32 v{vT+2}, v{vT+2}, v{vT+1}")
    A(f"v_lshlrev_b32 v{vT+2}, 4, v{vT+2}")
    A(f"v_lshrrev_b32 v{vT+3}, 1, v{vT}")
    A(f"v_mul_u32_u24 v{vT+3}, {BM//2}, v{vT+3}")
    A(f"v_add_u32 v{vT+3}, v{vT+3}, v{vT+1}")
    A(f"v_lshl_add_u32 v{vR}, v{vT+3}, 8, v{vT+2}")
    A(f"v_and_b32 v{vT+3}, 1, v{vT}")
    A(f"v_mul_u32_u24 v{vT+3}, {BN//2}, v{vT+3}")
    A(f"v_add_u32 v{vT+3}, v{vT+3}, v{vT+1}")
    A(f"v_lshl_add_u32 v{vR+1}, v{vT+3}, 8, v{vT+2}")
    A(f"v_add_u32 v{vR+1}, {BM*256}, v{vR+1}")
    for i in range(MT * NT * 4):
        A(f"v_mov_b32 v{acc0+i}, 0")
    if lnfuse:
        for i in range(2 * MT + NT):
            A(f"v_mov_b32 v{vS+i}, 0")
        A("s_mov_b32 s42, 0x3f803f80")
    def gload():
        for i in range(NA):
            A(f"s_add_u32 m0, s36, {i*4096}")
            A(f"s_add_u32 s22, s40, {i*16*strideA}")
            A(f"buffer_load_dwordx4 v{vOA}, s[8:11], s22 offen lds" if 'vreg' not in EXP else f"buffer_load_dwordx4 v[{200+4*i}:{203+4*i}], v{vOA}, s[8:11], s22 offen")
        for i in range(NB):
            A(f"s_add_u32 m0, s36, {BM*256 + i*4096}")
            A(f"s_add_u32 s22, s41, {i*16*strideB}")
            A(f"buffer_load_dwordx4 v{vOB}, s[12:15], s22 offen lds" if 'vreg' not in EXP else f"buffer_load_dwordx4 v[{220+4*i}:{223+4*i}], v{vOB}, s[12:15], s22 offen")
        A("s_add_u32 s38, s38, 256")
        A(f"s_cmp_ge_u32 s38, {KIT*256}")
        A("s_cselect_b32 s38, 0, s38")
        A("s_add_u32 s40, s34, s38")
        A("s_add_u32 s41, s35, s38")
        A(f"s_add_u32 s36, s36, {STG}")
        A(f"s_cmp_ge_u32 s36, {NST*STG}")
        A(f"s_cselect_b32 s22, {NST*STG}, 0")
        A("s_sub_u32 s36, s36, s22")
    def compute():
        for ks in range(4):
            A(f"v_add_u32 v{vR+2+2*ks}, s37, v{vR}")
            A(f"v_add_u32 v{vR+3+2*ks}, s37, v{vR+1}")
            if ks:
                A(f"v_xor_b32 v{vR+2+2*ks}, {ks*64}, v{vR+2+2*ks}")
                A(f"v_xor_b32 v{vR+3+2*ks}, {ks*64}, v{vR+3+2*ks}")
        A(f"s_add_u32 s37, s37, {STG}")
        A(f"s_cmp_ge_u32 s37, {NST*STG}")
        A(f"s_cselect_b32 s22, {NST*STG}, 0")
        A("s_sub_u32 s37, s37, s22")
        def rd(ks):
            fs = ks & 1
            for m in range(MT):
                A(f"ds_read_b128 v[{fA+(fs*MT+m)*4}:{fA+(fs*MT+m)*4+3}], v{vR+2+2*ks} offset:{m*4096}")
            for n in range(NT):
                A(f"ds_read_b128 v[{fB+(fs*NT+n)*4}:{fB+(fs*NT+n)*4+3}], v{vR+3+2*ks} offset:{n*4096}")
        rd(0)
        for ks in range(4):
            fs = ks & 1
            if ks < 3:
                rd(ks + 1)
            A(f"s_waitcnt lgkmcnt({MT+NT if ks < 3 else 0})")
            for m in range(MT):
                for n in range(NT):
                    a = acc0 + (m*NT+n)*4
                    if 'nomfma' in EXP: continue
                    A(f"v_mfma_f32_16x16x32_bf16 v[{a}:{a+3}], v[{fA+(fs*MT+m)*4}:{fA+(fs*MT+m)*4+3}], v[{fB+(fs*NT+n)*4}:{fB+(fs*NT+n)*4+3}], v[{a}:{a+3}]")
            if lnfuse:
                for m in range(MT):
                    for j in range(4):
                        r = fA+(fs*MT+m)*4+j
                        A(f"v_dot2_f32_bf16 v{vS+m}, v{r}, s42, v{vS+m}")
                        A(f"v_dot2_f32_bf16 v{vS+MT+m}, v{r}, v{r}, v{vS+MT+m}")
                for n in range(NT):
                    for j in range(4):
                        r = fB+(fs*NT+n)*4+j
                        A(f"v_dot2_f32_bf16 v{vS+2*MT+n}, v{r}, s42, v{vS+2*MT+n}")
    A("s_mov_b32 s36, s33")
    A("s_mov_b32 s37, 0")
    A("s_mul_i32 s38, s2, 7")
    A("s_lshr_b32 s22, s2, 4")
    A("s_add_u32 s38, s38, s22")
    A(f"s_mul_hi_u32 s22, s38, {(2**32 + KIT - 1)//KIT}")
    A(f"s_mul_i32 s22, s22, {KIT}")
    A("s_sub_u32 s38, s38, s22")
    A("s_lshl_b32 s38, s38, 8")
    A("s_add_u32 s40, s34, s38")
    A("s_add_u32 s41, s35, s38")
    A("s_mov_b32 s39, 0")
    L(f"L_{name}_pro")
    gload()
    A("s_add_u32 s39, s39, 1")
    A(f"s_cmp_lt_u32 s39, {NST-1}")
    A(f"s_cbranch_scc1 L_{name}_pro")
    A("s_mov_b32 s39, 0")
    L(f"L_{name}_loop")
    A(f"s_waitcnt vmcnt({(NST-2) * NL})")
    A("s_barrier")
    gload()
    compute()
    A("s_add_u32 s39, s39, 1")
    A(f"s_cmp_lt_u32 s39, {KIT-(NST-1)}")
    A(f"s_cbranch_scc1 L_{name}_loop")
    A("s_waitcnt vmcnt(0)")
    A("s_barrier")
    L(f"L_{name}_tail")
    compute()
    A("s_add_u32 s39, s39, 1")
    A(f"s_cmp_lt_u32 s39, {KIT}")
    A(f"s_cbranch_scc1 L_{name}_tail")
    A("s_nop 7")
    if lnfuse:
        NSV = 2 * MT + NT
        t0 = (vS + NSV + 3) // 4 * 4
        XO = NST * STG
        A(f"v_lshrrev_b32 v{t0}, 6, v0")
        A(f"v_lshlrev_b32 v{t0}, 12, v{t0}")
        A(f"v_add_u32 v{t0}, {XO}, v{t0}")
        XO = 0
        A(f"v_and_b32 v{t0+1}, 63, v0")
        A(f"v_lshl_add_u32 v{t0+1}, v{t0+1}, 2, v{t0}")
        A(f"v_and_b32 v{t0+2}, 15, v0")
        A(f"v_lshl_add_u32 v{t0+2}, v{t0+2}, 2, v{t0}")
        for i in range(NSV):
            A(f"ds_write_b32 v{t0+1}, v{vS+i} offset:{XO + i*256}")
        A("s_waitcnt lgkmcnt(0)")
        for i in range(NSV):
            for g in range(4):
                A(f"ds_read_b32 v{t0+4+g}, v{t0+2} offset:{XO + i*256 + g*64}")
            A("s_waitcnt lgkmcnt(0)")
            A(f"v_add_f32 v{vS+i}, v{t0+4}, v{t0+5}")
            A(f"v_add_f32 v{t0+6}, v{t0+6}, v{t0+7}")
            A(f"v_add_f32 v{vS+i}, v{vS+i}, v{t0+6}")
        for m in range(MT):
            s1, s2 = vS+m, vS+MT+m
            A(f"v_mul_f32 v{s1}, {1.0/640.0!r}, v{s1}")
            A(f"v_mul_f32 v{s2}, {1.0/640.0!r}, v{s2}")
            A(f"v_fma_f32 v{s2}, -v{s1}, v{s1}, v{s2}")
            A(f"v_max_f32 v{s2}, 0, v{s2}")
            bf16r(s2, s2)
            A(f"v_add_f32 v{s2}, 0x3727c5ac, v{s2}")
            bf16r(s2, s2)
            A(f"v_sqrt_f32 v{s2}, v{s2}")
            A("s_nop 0")
            bf16r(s2, s2)
            A(f"v_rcp_f32 v{s2}, v{s2}")
            bf16r(s1, s1)
            A(f"ds_write_b32 v{t0+2}, v{s1} offset:{XO + 3072 + m*128}")
            A(f"ds_write_b32 v{t0+2}, v{s2} offset:{XO + 3072 + m*128 + 64}")
        A(f"v_bfe_u32 v{t0+3}, v0, 4, 2")
        A(f"v_lshl_add_u32 v{t0+3}, v{t0+3}, 4, v{t0}")
        A("s_waitcnt lgkmcnt(0)")
        for m in range(MT):
            A(f"ds_read_b128 v[{t0+4}:{t0+7}], v{t0+3} offset:{XO + 3072 + m*128}")
            A(f"ds_read_b128 v[{t0+8}:{t0+11}], v{t0+3} offset:{XO + 3072 + m*128 + 64}")
            A("s_waitcnt lgkmcnt(0)")
            for n in range(NT):
                a = acc0 + (m*NT+n)*4
                for r in range(4):
                    A(f"v_fma_f32 v{a+r}, -v{t0+4+r}, v{vS+2*MT+n}, v{a+r}")
                    A(f"v_mul_f32 v{a+r}, v{a+r}, v{t0+8+r}")
    if 'nostore' not in EXP:
        epilogue(MT, NT, acc0, vT)
    L(f"L_{name}_end")
    A("s_endpgm")
    kdesc(name, 256 if 'vreg' in EXP else max(nv, 64))
    return NST * STG + (16384 if lnfuse else 0)

def gen_gemm1():
    def setup():
        A("s_load_dwordx2 s[4:5], s[0:1], 96")
        A("s_load_dwordx2 s[6:7], s[0:1], 0")
        A("s_load_dwordx4 s[24:27], s[0:1], 24")
        A("s_and_b32 s16, s2, 7")
        A("s_lshr_b32 s17, s2, 3")
        A("s_waitcnt lgkmcnt(0)")
        A("s_mul_i32 s18, s17, 81920")
        A("s_add_u32 s8, s6, s18")
        A("s_addc_u32 s9, s7, 0")
        A(f"s_sub_u32 s10, {S*D*2}, s18")
        A("s_mov_b32 s11, 0x00020000")
        A("s_cmp_lt_u32 s16, 4")
        A("s_cselect_b32 s12, s24, s26")
        A("s_cselect_b32 s13, s25, s27")
        A("s_and_b32 s18, s16, 3")
        A("s_mul_i32 s18, s18, 204800")
        A("s_add_u32 s12, s12, s18")
        A("s_addc_u32 s13, s13, 0")
        A(f"s_sub_u32 s14, {D*D*2}, s18")
        A("s_mov_b32 s15, 0x00020000")
        srd(28, 4, 1280*2048*2, WS_ABT)
    def epilogue(MT, NT, acc0, vT):
        A(f"v_lshrrev_b32 v{vT}, 6, v0")
        A(f"v_and_b32 v{vT+1}, 15, v0")
        A(f"v_and_b32 v{vT+2}, 1, v{vT}")
        A(f"v_mul_u32_u24 v{vT+2}, 80, v{vT+2}")
        A(f"v_add_u32 v{vT+1}, v{vT+1}, v{vT+2}")
        A("s_mul_i32 s18, s16, 160")
        A(f"v_add_u32 v{vT+1}, s18, v{vT+1}")
        A(f"v_lshlrev_b32 v{vT+1}, 12, v{vT+1}")
        A(f"v_lshrrev_b32 v{vT+2}, 1, v{vT}")
        A(f"v_lshlrev_b32 v{vT+2}, 5, v{vT+2}")
        A(f"v_bfe_u32 v{vT+3}, v0, 4, 2")
        A(f"v_lshl_add_u32 v{vT+2}, v{vT+3}, 2, v{vT+2}")
        A("s_lshl_b32 s18, s17, 6")
        A(f"v_add_u32 v{vT+2}, s18, v{vT+2}")
        A(f"v_lshl_add_u32 v{vT+1}, v{vT+2}, 1, v{vT+1}")
        for m in range(MT):
            for n in range(NT):
                a = acc0 + (m*NT+n)*4
                A(f"v_cvt_pk_bf16_f32 v{a}, v{a}, v{a+1}")
                A(f"v_cvt_pk_bf16_f32 v{a+1}, v{a+2}, v{a+3}")
                A(f"s_mov_b32 s18, {n*16*4096 + m*32}")
                A(f"buffer_store_dwordx2 v[{a}:{a+1}], v{vT+1}, s[28:31], s18 offen")
    return gen_gemm("gemm1_kernel", 64, 160, 5, 256, setup, epilogue, 1280, 1280, lnfuse=True)

def gen_gemm2():
    def setup():
        A("s_load_dwordx2 s[4:5], s[0:1], 96")
        A("s_load_dwordx4 s[24:27], s[0:1], 8")
        A("s_and_b32 s16, s2, 3")
        A("s_bfe_u32 s17, s2, 0x20002")
        A("s_lshr_b32 s19, s2, 4")
        A("s_waitcnt lgkmcnt(0)")
        A("s_lshr_b32 s18, s16, 1")
        A("s_mul_i32 s18, s18, 640")
        A("s_mul_i32 s20, s17, 160")
        A("s_add_u32 s18, s18, s20")
        A("s_lshl_b32 s18, s18, 12")
        A("s_and_b32 s20, s16, 1")
        A("s_lshl_b32 s21, s20, 11")
        A("s_add_u32 s18, s18, s21")
        A(f"s_add_u32 s20, s18, {WS_ABT}")
        A("s_add_u32 s8, s4, s20")
        A("s_addc_u32 s9, s5, 0")
        A(f"s_sub_u32 s10, {1280*2048*2}, s18")
        A("s_mov_b32 s11, 0x00020000")
        A("s_cmp_lt_u32 s16, 2")
        A("s_cselect_b32 s12, s24, s26")
        A("s_cselect_b32 s13, s25, s27")
        A("s_lshl_b32 s18, s19, 19")
        A("s_add_u32 s18, s18, s21")
        A("s_add_u32 s12, s12, s18")
        A("s_addc_u32 s13, s13, 0")
        A(f"s_sub_u32 s14, {S*S*2}, s18")
        A("s_mov_b32 s15, 0x00020000")
        srd(28, 4, 4*S*D*2, WS_P)
    def epilogue(MT, NT, acc0, vT):
        A(f"v_lshrrev_b32 v{vT}, 6, v0")
        A(f"v_and_b32 v{vT+1}, 15, v0")
        A(f"v_and_b32 v{vT+2}, 1, v{vT}")
        A(f"v_lshl_add_u32 v{vT+1}, v{vT+2}, 6, v{vT+1}")
        A("s_lshl_b32 s18, s19, 7")
        A("s_lshl_b32 s20, s16, 11")
        A("s_add_u32 s18, s18, s20")
        A(f"v_add_u32 v{vT+1}, s18, v{vT+1}")
        A(f"v_mul_u32_u24 v{vT+1}, 1280, v{vT+1}")
        A(f"v_lshrrev_b32 v{vT+2}, 1, v{vT}")
        A(f"v_mul_u32_u24 v{vT+2}, 80, v{vT+2}")
        A(f"v_bfe_u32 v{vT+3}, v0, 4, 2")
        A(f"v_lshl_add_u32 v{vT+2}, v{vT+3}, 2, v{vT+2}")
        A("s_mul_i32 s18, s17, 160")
        A(f"v_add_u32 v{vT+2}, s18, v{vT+2}")
        A(f"v_lshl_add_u32 v{vT+1}, v{vT+2}, 1, v{vT+1}")
        for m in range(MT):
            for n in range(NT):
                a = acc0 + (m*NT+n)*4
                A(f"v_cvt_pk_bf16_f32 v{a}, v{a}, v{a+1}")
                A(f"v_cvt_pk_bf16_f32 v{a+1}, v{a+2}, v{a+3}")
                A(f"s_mov_b32 s18, {n*16*1280 + m*32}")
                A(f"buffer_store_dwordx2 v[{a}:{a+1}], v{vT+1}, s[28:31], s18 offen")
    return gen_gemm("gemm2_kernel", 160, 128, 8, 256, setup, epilogue, 4096, 4096)

def gen_k3():
    name = "ln2_kernel"
    kstart(name)
    A("s_cmp_ge_u32 s2, 512")
    A("s_cbranch_scc1 L_k3_end")
    A("s_load_dwordx2 s[4:5], s[0:1], 0")
    A("s_load_dwordx2 s[6:7], s[0:1], 96")
    A("s_load_dwordx2 s[40:41], s[0:1], 48")
    A("s_load_dwordx2 s[42:43], s[0:1], 80")
    A("v_lshrrev_b32 v1, 6, v0")
    A("v_and_b32 v2, 63, v0")
    A("s_lshl_b32 s3, s2, 2")
    A("v_add_u32 v1, s3, v1")
    A("v_mul_u32_u24 v3, 1280, v1")
    A("v_lshl_add_u32 v3, v2, 2, v3")
    A("v_lshlrev_b32 v4, 1, v3")
    A("v_lshlrev_b32 v5, 2, v2")
    A("s_waitcnt lgkmcnt(0)")
    srd(8, 4, S*D*2)
    srd(12, 6, 4*S*D*2, WS_P)
    srd(16, 40, D*2)
    srd(44, 42, S*D*2)
    srd(48, 6, S*D*2, WS_H)
    srd(52, 6, S*D*2, WS_LN2)
    srd(56, 6, S*4, WS_SC)
    for j in range(5):
        A(f"buffer_load_dword v{10+j}, v3, s[8:11], 0 offen offset:{j*256}")
    for c in range(4):
        A(f"s_mov_b32 s3, {c*S*D*2}")
        for j in range(5):
            A(f"buffer_load_dword v{21+(c*5+j)*2}, v3, s[12:15], s3 offen offset:{j*256}")
    for j in range(5):
        A(f"buffer_load_dword v{60+j}, v5, s[16:19], 0 offen offset:{j*256}")
    A("s_waitcnt vmcnt(0)")
    for c in range(4):
        for j in range(5):
            A(f"v_lshlrev_b32 v{20+(c*5+j)*2}, 16, v{21+(c*5+j)*2}")
            A(f"v_and_b32 v{21+(c*5+j)*2}, 0xffff0000, v{21+(c*5+j)*2}")
    for j in range(5):
        for q in range(2):
            p0, p1, p2, p3 = [20+(c*5+j)*2+q for c in range(4)]
            A(f"v_add_f32 v6, v{p0}, v{p1}")
            bf16r(6, 6)
            A(f"v_add_f32 v7, v{p2}, v{p3}")
            bf16r(7, 7)
            A("v_sub_f32 v6, v6, v7")
            bf16r(6, 6)
            if q == 0:
                A(f"v_lshlrev_b32 v7, 16, v{10+j}")
            else:
                A(f"v_and_b32 v7, 0xffff0000, v{10+j}")
            A("v_add_f32 v6, v7, v6")
            bf16r(70+2*j+q, 6)
    ln_core(70, 80, 90, 20)
    for j in range(5):
        A(f"v_lshlrev_b32 v6, 16, v{60+j}")
        A(f"v_and_b32 v7, 0xffff0000, v{60+j}")
        if j == 0:
            A("v_mul_f32 v8, v6, v80")
        else:
            A(f"v_fmac_f32 v8, v6, v{80+2*j}")
        A(f"v_fmac_f32 v8, v7, v{81+2*j}")
    wave_reduce_add([8], 20)
    bf16r(8, 8)
    A("v_lshlrev_b32 v9, 2, v1")
    A("v_cmp_eq_u32 vcc, 0, v2")
    A("s_and_saveexec_b64 s[60:61], vcc")
    A("buffer_store_dword v8, v9, s[56:59], 0 offen")
    A("s_mov_b64 exec, s[60:61]")
    for j in range(5):
        A(f"v_cvt_pk_bf16_f32 v6, v{70+2*j}, v{71+2*j}")
        A(f"buffer_store_dword v6, v3, s[48:51], 0 offen offset:{j*256}")
        A(f"v_cvt_pk_bf16_f32 v7, v{80+2*j}, v{81+2*j}")
        A(f"buffer_store_dword v7, v3, s[52:55], 0 offen offset:{j*256}")
        A(f"v_add_f32 v8, v{70+2*j}, v{80+2*j}")
        A(f"v_add_f32 v9, v{71+2*j}, v{81+2*j}")
        A(f"v_cvt_pk_bf16_f32 v8, v8, v9")
        A(f"buffer_store_dword v8, v3, s[44:47], 0 offen offset:{j*256}")
    L("L_k3_end")
    A("s_endpgm")
    kdesc(name, 96)

def top8(sc_srd, lds_base, sidx):
    A("v_lshlrev_b32 v1, 5, v0")
    A(f"buffer_load_dwordx4 v[4:7], v1, s[{sc_srd}:{sc_srd+3}], 0 offen")
    A(f"buffer_load_dwordx4 v[8:11], v1, s[{sc_srd}:{sc_srd+3}], 0 offen offset:16")
    A("v_lshlrev_b32 v2, 3, v0")
    A("v_sub_u32 v2, 2047, v2")
    A("v_lshrrev_b32 v3, 6, v0")
    A(f"v_lshlrev_b32 v3, 2, v3")
    A(f"v_add_u32 v3, {lds_base}, v3")
    A(f"v_mov_b32 v13, {lds_base}")
    A("s_waitcnt vmcnt(0)")
    for i in range(8):
        A(f"v_ashrrev_i32 v12, 31, v{4+i}")
        A(f"v_or_b32 v12, 0x80000000, v12")
        A(f"v_xor_b32 v{4+i}, v{4+i}, v12")
        A(f"v_and_b32 v{4+i}, 0xffff0000, v{4+i}")
        A(f"v_subrev_u32 v12, {i}, v2")
        A(f"v_or_b32 v{4+i}, v{4+i}, v12")
    for r in range(8):
        A("v_max3_u32 v12, v4, v5, v6")
        A("v_max3_u32 v12, v12, v7, v8")
        A("v_max3_u32 v12, v12, v9, v10")
        A("v_max_u32 v12, v12, v11")
        A("s_nop 1")
        for mod in ("quad_perm:[1,0,3,2]", "quad_perm:[2,3,0,1]", "row_half_mirror", "row_mirror"):
            A(f"v_max_u32_dpp v12, v12, v12 {mod} row_mask:0xf bank_mask:0xf")
            A("s_nop 1")
        for j in range(4):
            A(f"v_readlane_b32 s{60+j}, v12, {16*j}")
        A("s_max_u32 s60, s60, s61")
        A("s_max_u32 s62, s62, s63")
        A("s_max_u32 s60, s60, s62")
        A("v_mov_b32 v12, s60")
        A(f"ds_write_b32 v3, v12 offset:{(r&1)*16}")
        A("s_waitcnt lgkmcnt(0)")
        A("s_barrier")
        A(f"ds_read_b128 v[16:19], v13 offset:{(r&1)*16}")
        A("s_waitcnt lgkmcnt(0)")
        A("v_max3_u32 v12, v16, v17, v18")
        A("v_max_u32 v12, v12, v19")
        A("s_nop 0")
        A("v_readfirstlane_b32 s60, v12")
        A("s_and_b32 s61, s60, 0x7ff")
        A(f"s_sub_u32 s{sidx+r}, 2047, s61")
        for i in range(8):
            A(f"v_cmp_ne_u32 vcc, s60, v{4+i}")
            A("s_nop 1")
            A(f"v_cndmask_b32 v{4+i}, 0, v{4+i}, vcc")

WS_YP = 52 << 20
def gen_k4():
    name = "ffn1_kernel"
    kstart(name)
    A("s_cmp_ge_u32 s2, 96")
    A("s_cbranch_scc1 L_k4_end")
    A("s_load_dwordx2 s[6:7], s[0:1], 96")
    A("s_load_dwordx4 s[40:43], s[0:1], 56")
    A("s_load_dwordx2 s[44:45], s[0:1], 72")
    A("v_lshrrev_b32 v1, 6, v0")
    A("v_and_b32 v22, 15, v0")
    A("v_bfe_u32 v23, v0, 4, 2")
    A("v_readfirstlane_b32 s47, v1")
    A("s_waitcnt lgkmcnt(0)")
    srd(8, 6, S*4, WS_SC)
    srd(12, 6, S*D*2, WS_LN2)
    srd(16, 40, D*F*2)
    srd(20, 42, D*F*2)
    srd(24, 6, 96*8*D*4, WS_YP)
    srd(28, 6, 32, WS_IDX)
    srd(48, 44, D*F*2)
    RB = 64
    AB = RB + 8192
    A("v_mul_u32_u24 v24, 24576, v23")
    A("v_lshl_add_u32 v24, v22, 1, v24")
    A("s_mul_i32 s52, s47, 491520")
    A("s_lshl_b32 s3, s2, 5")
    A("s_add_u32 s52, s52, s3")
    for ks in range(5):
        for j in range(8):
            A(f"s_add_u32 s3, s52, {(32*ks+j)*3072}")
            A(f"buffer_load_ushort v{128+ks*8+j}, v24, s[16:19], s3 offen")
            A(f"buffer_load_ushort v{168+ks*8+j}, v24, s[20:23], s3 offen")
    A("v_mul_u32_u24 v25, 5120, v23")
    A("v_lshl_add_u32 v25, v22, 1, v25")
    A("s_mul_i32 s53, s2, 20480")
    A("s_mul_i32 s3, s47, 320")
    A("s_add_u32 s53, s53, s3")
    for nt in range(10):
        for j in range(4):
            A(f"s_add_u32 s3, s53, {j*1280 + nt*32}")
            A(f"buffer_load_ushort v{208+nt*4+j}, v25, s[48:51], s3 offen")
    top8(8, 0, 32)
    A("v_mov_b32 v20, s32")
    for t in range(1, 8):
        A(f"v_cmp_eq_u32 vcc, {t}, v22")
        A(f"v_mov_b32 v2, s{32+t}")
        A("v_cndmask_b32 v20, v20, v2, vcc")
    A("s_cmp_lg_u32 s2, 0")
    A("s_cbranch_scc1 L_k4_noidx")
    A("v_cmp_gt_u32 vcc, 8, v0")
    A("s_and_saveexec_b64 s[60:61], vcc")
    A("v_lshlrev_b32 v2, 2, v0")
    A("buffer_store_dword v20, v2, s[28:31], 0 offen")
    A("s_mov_b64 exec, s[60:61]")
    L("L_k4_noidx")
    A("v_mul_u32_u24 v21, 1280, v20")
    A("v_lshl_add_u32 v21, v23, 4, v21")
    A("s_mul_i32 s3, s47, 320")
    for ks in range(5):
        A(f"buffer_load_dwordx4 v[{100+ks*4}:{103+ks*4}], v21, s[12:15], s3 offen offset:{ks*64}")
    A("s_waitcnt vmcnt(0)")
    for i in range(20):
        A(f"v_lshl_or_b32 v{40+i}, v{129+2*i}, 16, v{128+2*i}")
        A(f"v_lshl_or_b32 v{60+i}, v{169+2*i}, 16, v{168+2*i}")
        A(f"v_lshl_or_b32 v{80+i}, v{209+2*i}, 16, v{208+2*i}")
    A("s_nop 1")
    for ks in range(5):
        c0 = "0" if ks == 0 else "v[120:123]"
        c1 = "0" if ks == 0 else "v[124:127]"
        A(f"v_mfma_f32_16x16x32_bf16 v[120:123], v[{100+ks*4}:{103+ks*4}], v[{40+ks*4}:{43+ks*4}], {c0}")
        A(f"v_mfma_f32_16x16x32_bf16 v[124:127], v[{100+ks*4}:{103+ks*4}], v[{60+ks*4}:{63+ks*4}], {c1}")
    A("v_and_b32 v1, 63, v0")
    A("v_lshlrev_b32 v1, 5, v1")
    A("s_lshl_b32 s3, s47, 11")
    A("v_add_u32 v2, s3, v1")
    A("s_nop 7")
    A(f"ds_write_b128 v2, v[120:123] offset:{RB}")
    A(f"ds_write_b128 v2, v[124:127] offset:{RB+16}")
    A("s_waitcnt lgkmcnt(0)")
    A("s_barrier")
    for w in range(4):
        A(f"ds_read_b128 v[{40+w*8}:{43+w*8}], v1 offset:{RB + w*2048}")
        A(f"ds_read_b128 v[{44+w*8}:{47+w*8}], v1 offset:{RB + w*2048 + 16}")
    A("s_waitcnt lgkmcnt(0)")
    for i in range(8):
        A(f"v_add_f32 v{40+i}, v{40+i}, v{48+i}")
        A(f"v_add_f32 v{56+i}, v{56+i}, v{64+i}")
        A(f"v_add_f32 v{40+i}, v{40+i}, v{56+i}")
    A("s_lshl_b32 s3, s47, 9")
    A("v_lshlrev_b32 v2, 7, v23")
    A("v_lshl_add_u32 v2, v22, 1, v2")
    A("v_add_u32 v2, s3, v2")
    for r in range(4):
        g, u = 40 + r, 44 + r
        bf16r(g, g)
        bf16r(u, u)
        A(f"v_mul_f32 v9, 0xbfb8aa3b, v{g}")
        A("v_exp_f32 v9, v9")
        A("s_nop 0")
        A("v_add_f32 v9, 1.0, v9")
        A("v_rcp_f32 v9, v9")
        A("s_nop 0")
        A(f"v_mul_f32 v9, v{g}, v9")
        bf16r(9, 9)
        A(f"v_mul_f32 v9, v9, v{u}")
        A("v_cvt_pk_bf16_f32 v9, v9, v9")
        A(f"ds_write_b16 v2, v9 offset:{AB + r*32}")
    A("v_lshlrev_b32 v3, 5, v22")
    A("v_lshl_add_u32 v3, v23, 3, v3")
    A("v_add_u32 v3, s3, v3")
    A("s_waitcnt lgkmcnt(0)")
    A(f"ds_read_b64 v[10:11], v3 offset:{AB}")
    A("v_mul_u32_u24 v4, 2560, v22")
    A("v_lshl_add_u32 v4, v23, 4, v4")
    A("s_mul_i32 s53, s2, 20480")
    A("s_mul_i32 s3, s47, 640")
    A("s_add_u32 s53, s53, s3")
    A("s_waitcnt lgkmcnt(0)")
    for nt in range(10):
        A(f"v_mfma_f32_16x16x16_bf16 v[{40+nt*4}:{43+nt*4}], v[{80+nt*2}:{81+nt*2}], v[10:11], 0")
    A("v_cmp_gt_u32 vcc, 8, v22")
    A("s_and_saveexec_b64 s[60:61], vcc")
    A("s_nop 7")
    for nt in range(10):
        A(f"s_add_u32 s3, s53, {nt*64}")
        A(f"buffer_store_dwordx4 v[{40+nt*4}:{43+nt*4}], v4, s[24:27], s3 offen")
    A("s_mov_b64 exec, s[60:61]")
    L("L_k4_end")
    A("s_endpgm")
    kdesc(name, 248)
    return AB + 2048

def gen_k5():
    name = "ffn2_kernel"
    kstart(name)
    A("s_cmp_ge_u32 s2, 20")
    A("s_cbranch_scc1 L_k5_end")
    A("s_load_dwordx2 s[6:7], s[0:1], 96")
    A("s_load_dwordx2 s[42:43], s[0:1], 80")
    A("s_waitcnt lgkmcnt(0)")
    srd(8, 6, S*4, WS_SC)
    srd(12, 6, S*D*2, WS_LN2)
    srd(20, 42, S*D*2)
    srd(24, 6, 96*8*D*4, WS_YP)
    srd(28, 6, 32, WS_IDX)
    srd(44, 6, S*D*2, WS_H)
    A("s_lshl_b32 s3, s2, 8")
    A("v_add_u32 v1, s3, v0")
    A("v_mul_u32_u24 v2, 0x199a, v1")
    A("v_lshrrev_b32 v2, 22, v2")
    A("v_mul_u32_u24 v3, 640, v2")
    A("v_sub_u32 v3, v1, v3")
    A("v_lshlrev_b32 v4, 2, v2")
    A("buffer_load_dword v5, v4, s[28:31], 0 offen")
    A("v_lshlrev_b32 v1, 2, v1")
    for g in range(96):
        A(f"s_mov_b32 s3, {g*20480}")
        A(f"buffer_load_dword v{16+g}, v1, s[24:27], s3 offen")
    A("s_waitcnt vmcnt(63)")
    A("s_waitcnt vmcnt(0)")
    A("v_lshlrev_b32 v6, 2, v5")
    A("buffer_load_dword v9, v6, s[8:11], 0 offen")
    A("v_mul_u32_u24 v6, 1280, v5")
    A("v_lshl_add_u32 v6, v3, 1, v6")
    A("buffer_load_ushort v10, v6, s[12:15], 0 offen")
    A("buffer_load_ushort v11, v6, s[44:47], 0 offen")
    for g in range(1, 96):
        A(f"v_add_f32 v16, v16, v{16+g}")
    bf16r(8, 16)
    A("s_waitcnt vmcnt(0)")
    A("v_mul_f32 v9, 0xbfb8aa3b, v9")
    A("v_exp_f32 v9, v9")
    A("s_nop 0")
    A("v_add_f32 v9, 1.0, v9")
    A("v_rcp_f32 v9, v9")
    A("s_nop 0")
    bf16r(9, 9)
    A("v_mul_f32 v8, v8, v9")
    bf16r(8, 8)
    A("v_lshlrev_b32 v10, 16, v10")
    A("v_lshlrev_b32 v11, 16, v11")
    A("v_add_f32 v8, v10, v8")
    bf16r(8, 8)
    A("v_add_f32 v8, v11, v8")
    A("v_cvt_pk_bf16_f32 v8, v8, v8")
    A("buffer_store_short v8, v6, s[20:23], 0 offen")
    L("L_k5_end")
    A("s_endpgm")
    kdesc(name, 120)
    return 0

hdr = open('sequential_preLN__spectral_fnet__moe_arch_mod__prompt.s.ref').read().split('\n')
hdr = [l for l in hdr if l.startswith(';') and '@launch' not in l]
lds1 = gen_gemm1()
lds2 = gen_gemm2()
gen_k3()
lds4 = gen_k4()
lds5 = gen_k5()
launch = [
    f"; @launch kernel=gemm1_kernel grid=(256,1,1) block=(256,1,1) lds={lds1}",
    f"; @launch kernel=gemm2_kernel grid=(256,1,1) block=(256,1,1) lds={lds2}",
    "; @launch kernel=ln2_kernel grid=(512,1,1) block=(256,1,1) lds=0",
    f"; @launch kernel=ffn1_kernel grid=(96,1,1) block=(256,1,1) lds={lds4}",
    f"; @launch kernel=ffn2_kernel grid=(20,1,1) block=(256,1,1) lds={lds5}",
]
txt = "\n".join(hdr + launch + ['.amdgcn_target "amdgcn-amd-amdhsa--gfx950"', ".text"] + out +
                ['.section .rodata,"a"'] + descs) + "\n"
open(sys.argv[1] if len(sys.argv) > 1 else 'sequential_preLN__spectral_fnet__moe_arch_mod__prompt.s', 'w').write(txt)
print("ok", len(txt))
```

```python
import sys, os
EXP = os.environ.get('EXP','')

S, D, F = 2048, 640, 1536
WS_LN1 = 0
WS_ABT = 4 << 20
WS_P   = 16 << 20
WS_H   = 40 << 20
WS_LN2 = 44 << 20
WS_SC  = 48 << 20
WS_ACT = (48 << 20) + (64 << 10)
WS_IDX = (48 << 20) + (128 << 10)

out = []
import re as _re
def A(s):
    if s.startswith("buffer_"):
        m = _re.search(r"offset:(\d+)", s)
        assert not m or int(m.group(1)) < 4096, s
    out.append("    " + s)
def L(s):
    out.append(s + ":")
def C(s):
    out.append("    ; " + s)

def srd(dst, ptr, size, off=0):
    if off:
        A(f"s_add_u32 s{dst}, s{ptr}, {off}")
        A(f"s_addc_u32 s{dst+1}, s{ptr+1}, 0")
    else:
        A(f"s_mov_b32 s{dst}, s{ptr}")
        A(f"s_mov_b32 s{dst+1}, s{ptr+1}")
    A(f"s_mov_b32 s{dst+2}, {size}")
    A(f"s_mov_b32 s{dst+3}, 0x00020000")

def kstart(name):
    out.append(f".globl {name}")
    out.append(".p2align 8")
    out.append(f".type {name},@function")
    L(name)

descs = []
def kdesc(name, vgpr, sgpr=102):
    acc = (vgpr + 3) // 4 * 4
    descs.append(f""".p2align 6
.amdhsa_kernel {name}
  .amdhsa_next_free_vgpr {vgpr}
  .amdhsa_next_free_sgpr {sgpr}
  .amdhsa_accum_offset {acc}
  .amdhsa_group_segment_fixed_size 0
  .amdhsa_kernarg_size 104
  .amdhsa_user_sgpr_count 2
  .amdhsa_user_sgpr_kernarg_segment_ptr 1
  .amdhsa_system_sgpr_workgroup_id_x 1
.end_amdhsa_kernel""")

def wave_reduce_add(regs, stmp):
    A("s_nop 1")
    for mod in ("quad_perm:[1,0,3,2]", "quad_perm:[2,3,0,1]", "row_half_mirror", "row_mirror"):
        for r in regs:
            A(f"v_add_f32_dpp v{r}, v{r}, v{r} {mod} row_mask:0xf bank_mask:0xf")
        if len(regs) < 2:
            A("s_nop 1")
        else:
            A("s_nop 0")
    for i, r in enumerate(regs):
        for j in range(4):
            A(f"v_readlane_b32 s{stmp+4*i+j}, v{r}, {16*j}")
    A("s_nop 1")
    for i, r in enumerate(regs):
        A(f"v_mov_b32 v{r}, s{stmp+4*i}")
        for j in range(1, 4):
            A(f"v_add_f32 v{r}, s{stmp+4*i+j}, v{r}")

def bf16r(dst, src, tmp=None):
    A(f"v_cvt_pk_bf16_f32 v{dst}, v{src}, v{src}")
    A(f"v_lshlrev_b32 v{dst}, 16, v{dst}")

def ln_core(X, O, T, stmp):
    A(f"v_add_f32 v{T}, v{X}, v{X+1}")
    for j in range(2, 10):
        A(f"v_add_f32 v{T}, v{T}, v{X+j}")
    wave_reduce_add([T], stmp)
    A(f"v_mul_f32 v{T}, {1.0/640.0!r}, v{T}")
    A(f"v_sub_f32 v{T+1}, v{X}, v{T}")
    A(f"v_mul_f32 v{T+2}, v{T+1}, v{T+1}")
    for j in range(1, 10):
        A(f"v_sub_f32 v{T+1}, v{X+j}, v{T}")
        A(f"v_fmac_f32 v{T+2}, v{T+1}, v{T+1}")
    wave_reduce_add([T+2], stmp)
    A(f"v_mul_f32 v{T+2}, {1.0/640.0!r}, v{T+2}")
    bf16r(T+2, T+2)
    A(f"v_add_f32 v{T+2}, 0x3727c5ac, v{T+2}")
    bf16r(T+2, T+2)
    A(f"v_sqrt_f32 v{T+2}, v{T+2}")
    A("s_nop 0")
    bf16r(T+2, T+2)
    A(f"v_rcp_f32 v{T+2}, v{T+2}")
    bf16r(T, T)
    for j in range(10):
        A(f"v_sub_f32 v{T+1}, v{X+j}, v{T}")
        bf16r(T+1, T+1)
        A(f"v_mul_f32 v{T+1}, v{T+1}, v{T+2}")
        bf16r(O+j, T+1)

def gen_ln1():
    name = "ln1_kernel"
    kstart(name)
    A("s_cmp_ge_u32 s2, 512")
    A("s_cbranch_scc1 L_ln1_end")
    A("s_load_dwordx2 s[4:5], s[0:1], 0")
    A("s_load_dwordx2 s[6:7], s[0:1], 96")
    A("v_lshrrev_b32 v1, 6, v0")
    A("v_and_b32 v2, 63, v0")
    A("s_lshl_b32 s3, s2, 2")
    A("v_add_u32 v1, s3, v1")
    A("v_mul_u32_u24 v1, 1280, v1")
    A("v_lshl_add_u32 v1, v2, 2, v1")
    A("s_waitcnt lgkmcnt(0)")
    srd(8, 4, S*D*2)
    srd(12, 6, S*D*2, WS_LN1)
    for j in range(5):
        A(f"buffer_load_dword v{10+j}, v1, s[8:11], 0 offen offset:{j*256}")
    A("s_waitcnt vmcnt(0)")
    for j in range(5):
        A(f"v_lshlrev_b32 v{20+2*j}, 16, v{10+j}")
        A(f"v_and_b32 v{21+2*j}, 0xffff0000, v{10+j}")
    ln_core(20, 30, 40, 20)
    for j in range(5):
        A(f"v_cvt_pk_bf16_f32 v{10+j}, v{30+2*j}, v{31+2*j}")
    for j in range(5):
        A(f"buffer_store_dword v{10+j}, v1, s[12:15], 0 offen offset:{j*256}")
    L("L_ln1_end")
    A("s_endpgm")
    kdesc(name, 48)

def gen_gemm(name, BM, BN, KIT, nwg, setup, epilogue, strideA, strideB, NST=2, lnfuse=False):
    MT, NT = BM // 32, BN // 32
    CA, CB = BM // 4, BN // 4
    NA, NB = CA // 4, CB // 4
    NL = NA + NB
    STG = (BM + BN) * 256
    vOA, vOB = 1, 2
    vR = 3
    vT = 13
    acc0 = 20
    fA = acc0 + MT * NT * 4
    fB = fA + 2 * MT * 4
    nv = fB + 2 * NT * 4
    vS = nv
    if lnfuse:
        nv += 2 * MT + NT + 16
    kstart(name)
    A(f"s_cmp_ge_u32 s2, {nwg}")
    A(f"s_cbranch_scc1 L_{name}_end")
    if EXP == 'empty':
        A(f"s_branch L_{name}_end")
    setup()
    A(f"v_lshrrev_b32 v{vT}, 6, v0")
    A("s_nop 0")
    A(f"v_readfirstlane_b32 s32, v{vT}")
    A("s_lshl_b32 s33, s32, 10")
    A(f"s_mul_i32 s34, s32, {4*strideA}")
    A(f"s_mul_i32 s35, s32, {4*strideB}")
    A(f"v_bfe_u32 v{vT+1}, v0, 4, 2")
    A(f"v_and_b32 v{vT+2}, 15, v0")
    A(f"v_lshrrev_b32 v{vT+3}, 4, v0")
    A(f"v_xor_b32 v{vT+2}, v{vT+2}, v{vT+3}")
    A(f"v_lshlrev_b32 v{vT+2}, 4, v{vT+2}")
    A(f"s_mov_b32 s20, {strideA}")
    A(f"s_mov_b32 s21, {strideB}")
    A(f"v_mul_lo_u32 v{vOA}, v{vT+1}, s20")
    A(f"v_add_u32 v{vOA}, v{vOA}, v{vT+2}")
    A(f"v_mul_lo_u32 v{vOB}, v{vT+1}, s21")
    A(f"v_add_u32 v{vOB}, v{vOB}, v{vT+2}")
    if 'contig' in EXP:
        A(f"v_and_b32 v{vOA}, 63, v0")
        A(f"v_lshlrev_b32 v{vOA}, 4, v{vOA}")
        A(f"v_mov_b32 v{vOB}, v{vOA}")
    A(f"v_and_b32 v{vT+1}, 15, v0")
    A(f"v_bfe_u32 v{vT+2}, v0, 4, 2")
    A(f"v_xor_b32 v{vT+2}, v{vT+2}, v{vT+1}")
    A(f"v_lshlrev_b32 v{vT+2}, 4, v{vT+2}")
    A(f"v_lshrrev_b32 v{vT+3}, 1, v{vT}")
    A(f"v_mul_u32_u24 v{vT+3}, {BM//2}, v{vT+3}")
    A(f"v_add_u32 v{vT+3}, v{vT+3}, v{vT+1}")
    A(f"v_lshl_add_u32 v{vR}, v{vT+3}, 8, v{vT+2}")
    A(f"v_and_b32 v{vT+3}, 1, v{vT}")
    A(f"v_mul_u32_u24 v{vT+3}, {BN//2}, v{vT+3}")
    A(f"v_add_u32 v{vT+3}, v{vT+3}, v{vT+1}")
    A(f"v_lshl_add_u32 v{vR+1}, v{vT+3}, 8, v{vT+2}")
    A(f"v_add_u32 v{vR+1}, {BM*256}, v{vR+1}")
    for i in range(MT * NT * 4):
        A(f"v_mov_b32 v{acc0+i}, 0")
    if lnfuse:
        for i in range(2 * MT + NT):
            A(f"v_mov_b32 v{vS+i}, 0")
        A("s_mov_b32 s42, 0x3f803f80")
    def gload():
        for i in range(NA):
            A(f"s_add_u32 m0, s36, {i*4096}")
            A(f"s_add_u32 s22, s40, {i*16*strideA}")
            A(f"buffer_load_dwordx4 v{vOA}, s[8:11], s22 offen lds" if 'vreg' not in EXP else f"buffer_load_dwordx4 v[{200+4*i}:{203+4*i}], v{vOA}, s[8:11], s22 offen")
        for i in range(NB):
            A(f"s_add_u32 m0, s36, {BM*256 + i*4096}")
            A(f"s_add_u32 s22, s41, {i*16*strideB}")
            A(f"buffer_load_dwordx4 v{vOB}, s[12:15], s22 offen lds" if 'vreg' not in EXP else f"buffer_load_dwordx4 v[{220+4*i}:{223+4*i}], v{vOB}, s[12:15], s22 offen")
        A("s_add_u32 s38, s38, 256")
        A(f"s_cmp_ge_u32 s38, {KIT*256}")
        A("s_cselect_b32 s38, 0, s38")
        A("s_add_u32 s40, s34, s38")
        A("s_add_u32 s41, s35, s38")
        A(f"s_add_u32 s36, s36, {STG}")
        A(f"s_cmp_ge_u32 s36, {NST*STG}")
        A(f"s_cselect_b32 s22, {NST*STG}, 0")
        A("s_sub_u32 s36, s36, s22")
    def compute():
        for ks in range(4):
            A(f"v_add_u32 v{vR+2+2*ks}, s37, v{vR}")
            A(f"v_add_u32 v{vR+3+2*ks}, s37, v{vR+1}")
            if ks:
                A(f"v_xor_b32 v{vR+2+2*ks}, {ks*64}, v{vR+2+2*ks}")
                A(f"v_xor_b32 v{vR+3+2*ks}, {ks*64}, v{vR+3+2*ks}")
        A(f"s_add_u32 s37, s37, {STG}")
        A(f"s_cmp_ge_u32 s37, {NST*STG}")
        A(f"s_cselect_b32 s22, {NST*STG}, 0")
        A("s_sub_u32 s37, s37, s22")
        def rd(ks):
            fs = ks & 1
            for m in range(MT):
                A(f"ds_read_b128 v[{fA+(fs*MT+m)*4}:{fA+(fs*MT+m)*4+3}], v{vR+2+2*ks} offset:{m*4096}")
            for n in range(NT):
                A(f"ds_read_b128 v[{fB+(fs*NT+n)*4}:{fB+(fs*NT+n)*4+3}], v{vR+3+2*ks} offset:{n*4096}")
        rd(0)
        for ks in range(4):
            fs = ks & 1
            if ks < 3:
                rd(ks + 1)
            A(f"s_waitcnt lgkmcnt({MT+NT if ks < 3 else 0})")
            for m in range(MT):
                for n in range(NT):
                    a = acc0 + (m*NT+n)*4
                    if 'nomfma' in EXP: continue
                    A(f"v_mfma_f32_16x16x32_bf16 v[{a}:{a+3}], v[{fA+(fs*MT+m)*4}:{fA+(fs*MT+m)*4+3}], v[{fB+(fs*NT+n)*4}:{fB+(fs*NT+n)*4+3}], v[{a}:{a+3}]")
            if lnfuse:
                for m in range(MT):
                    for j in range(4):
                        r = fA+(fs*MT+m)*4+j
                        A(f"v_dot2_f32_bf16 v{vS+m}, v{r}, s42, v{vS+m}")
                        A(f"v_dot2_f32_bf16 v{vS+MT+m}, v{r}, v{r}, v{vS+MT+m}")
                for n in range(NT):
                    for j in range(4):
                        r = fB+(fs*NT+n)*4+j
                        A(f"v_dot2_f32_bf16 v{vS+2*MT+n}, v{r}, s42, v{vS+2*MT+n}")
    A("s_mov_b32 s36, s33")
    A("s_mov_b32 s37, 0")
    if lnfuse:
        A("s_mul_i32 s38, s2, 7")
        A("s_lshr_b32 s22, s2, 4")
        A("s_add_u32 s38, s38, s22")
    else:
        A("s_mov_b32 s38, s19")
    A(f"s_mul_hi_u32 s22, s38, {(2**32 + KIT - 1)//KIT}")
    A(f"s_mul_i32 s22, s22, {KIT}")
    A("s_sub_u32 s38, s38, s22")
    A("s_lshl_b32 s38, s38, 8")
    A("s_add_u32 s40, s34, s38")
    A("s_add_u32 s41, s35, s38")
    A("s_mov_b32 s39, 0")
    L(f"L_{name}_pro")
    gload()
    A("s_add_u32 s39, s39, 1")
    A(f"s_cmp_lt_u32 s39, {NST-1}")
    A(f"s_cbranch_scc1 L_{name}_pro")
    A("s_mov_b32 s39, 0")
    L(f"L_{name}_loop")
    A(f"s_waitcnt vmcnt({(NST-2) * NL})")
    A("s_barrier")
    gload()
    compute()
    A("s_add_u32 s39, s39, 1")
    A(f"s_cmp_lt_u32 s39, {KIT-(NST-1)}")
    A(f"s_cbranch_scc1 L_{name}_loop")
    A("s_waitcnt vmcnt(0)")
    A("s_barrier")
    L(f"L_{name}_tail")
    compute()
    A("s_add_u32 s39, s39, 1")
    A(f"s_cmp_lt_u32 s39, {KIT}")
    A(f"s_cbranch_scc1 L_{name}_tail")
    A("s_nop 7")
    if lnfuse:
        NSV = 2 * MT + NT
        t0 = (vS + NSV + 3) // 4 * 4
        XO = NST * STG
        A(f"v_lshrrev_b32 v{t0}, 6, v0")
        A(f"v_lshlrev_b32 v{t0}, 12, v{t0}")
        A(f"v_add_u32 v{t0}, {XO}, v{t0}")
        XO = 0
        A(f"v_and_b32 v{t0+1}, 63, v0")
        A(f"v_lshl_add_u32 v{t0+1}, v{t0+1}, 2, v{t0}")
        A(f"v_and_b32 v{t0+2}, 15, v0")
        A(f"v_lshl_add_u32 v{t0+2}, v{t0+2}, 2, v{t0}")
        for i in range(NSV):
            A(f"ds_write_b32 v{t0+1}, v{vS+i} offset:{XO + i*256}")
        A("s_waitcnt lgkmcnt(0)")
        for i in range(NSV):
            for g in range(4):
                A(f"ds_read_b32 v{t0+4+g}, v{t0+2} offset:{XO + i*256 + g*64}")
            A("s_waitcnt lgkmcnt(0)")
            A(f"v_add_f32 v{vS+i}, v{t0+4}, v{t0+5}")
            A(f"v_add_f32 v{t0+6}, v{t0+6}, v{t0+7}")
            A(f"v_add_f32 v{vS+i}, v{vS+i}, v{t0+6}")
        for m in range(MT):
            s1, s2 = vS+m, vS+MT+m
            A(f"v_mul_f32 v{s1}, {1.0/640.0!r}, v{s1}")
            A(f"v_mul_f32 v{s2}, {1.0/640.0!r}, v{s2}")
            A(f"v_fma_f32 v{s2}, -v{s1}, v{s1}, v{s2}")
            A(f"v_max_f32 v{s2}, 0, v{s2}")
            bf16r(s2, s2)
            A(f"v_add_f32 v{s2}, 0x3727c5ac, v{s2}")
            bf16r(s2, s2)
            A(f"v_sqrt_f32 v{s2}, v{s2}")
            A("s_nop 0")
            bf16r(s2, s2)
            A(f"v_rcp_f32 v{s2}, v{s2}")
            bf16r(s1, s1)
            A(f"ds_write_b32 v{t0+2}, v{s1} offset:{XO + 3072 + m*128}")
            A(f"ds_write_b32 v{t0+2}, v{s2} offset:{XO + 3072 + m*128 + 64}")
        A(f"v_bfe_u32 v{t0+3}, v0, 4, 2")
        A(f"v_lshl_add_u32 v{t0+3}, v{t0+3}, 4, v{t0}")
        A("s_waitcnt lgkmcnt(0)")
        for m in range(MT):
            A(f"ds_read_b128 v[{t0+4}:{t0+7}], v{t0+3} offset:{XO + 3072 + m*128}")
            A(f"ds_read_b128 v[{t0+8}:{t0+11}], v{t0+3} offset:{XO + 3072 + m*128 + 64}")
            A("s_waitcnt lgkmcnt(0)")
            for n in range(NT):
                a = acc0 + (m*NT+n)*4
                for r in range(4):
                    A(f"v_fma_f32 v{a+r}, -v{t0+4+r}, v{vS+2*MT+n}, v{a+r}")
                    A(f"v_mul_f32 v{a+r}, v{a+r}, v{t0+8+r}")
    if 'nostore' not in EXP:
        epilogue(MT, NT, acc0, vT)
    L(f"L_{name}_end")
    A("s_endpgm")
    kdesc(name, 256 if 'vreg' in EXP else max(nv, 64))
    return NST * STG + (16384 if lnfuse else 0)

def gen_gemm1():
    def setup():
        A("s_load_dwordx2 s[4:5], s[0:1], 96")
        A("s_load_dwordx2 s[6:7], s[0:1], 0")
        A("s_load_dwordx4 s[24:27], s[0:1], 24")
        A("s_and_b32 s16, s2, 7")
        A("s_lshr_b32 s17, s2, 3")
        A("s_waitcnt lgkmcnt(0)")
        A("s_mul_i32 s18, s17, 81920")
        A("s_add_u32 s8, s6, s18")
        A("s_addc_u32 s9, s7, 0")
        A(f"s_sub_u32 s10, {S*D*2}, s18")
        A("s_mov_b32 s11, 0x00020000")
        A("s_cmp_lt_u32 s16, 4")
        A("s_cselect_b32 s12, s24, s26")
        A("s_cselect_b32 s13, s25, s27")
        A("s_and_b32 s18, s16, 3")
        A("s_mul_i32 s18, s18, 204800")
        A("s_add_u32 s12, s12, s18")
        A("s_addc_u32 s13, s13, 0")
        A(f"s_sub_u32 s14, {D*D*2}, s18")
        A("s_mov_b32 s15, 0x00020000")
        srd(28, 4, 1280*2048*2, WS_ABT)
    def epilogue(MT, NT, acc0, vT):
        A(f"v_lshrrev_b32 v{vT}, 6, v0")
        A(f"v_and_b32 v{vT+1}, 15, v0")
        A(f"v_and_b32 v{vT+2}, 1, v{vT}")
        A(f"v_mul_u32_u24 v{vT+2}, 80, v{vT+2}")
        A(f"v_add_u32 v{vT+1}, v{vT+1}, v{vT+2}")
        A("s_mul_i32 s18, s16, 160")
        A(f"v_add_u32 v{vT+1}, s18, v{vT+1}")
        A(f"v_lshlrev_b32 v{vT+1}, 12, v{vT+1}")
        A(f"v_lshrrev_b32 v{vT+2}, 1, v{vT}")
        A(f"v_lshlrev_b32 v{vT+2}, 5, v{vT+2}")
        A(f"v_bfe_u32 v{vT+3}, v0, 4, 2")
        A(f"v_lshl_add_u32 v{vT+2}, v{vT+3}, 2, v{vT+2}")
        A("s_lshl_b32 s18, s17, 6")
        A(f"v_add_u32 v{vT+2}, s18, v{vT+2}")
        A(f"v_lshl_add_u32 v{vT+1}, v{vT+2}, 1, v{vT+1}")
        for m in range(MT):
            for n in range(NT):
                a = acc0 + (m*NT+n)*4
                A(f"v_cvt_pk_bf16_f32 v{a}, v{a}, v{a+1}")
                A(f"v_cvt_pk_bf16_f32 v{a+1}, v{a+2}, v{a+3}")
                A(f"s_mov_b32 s18, {n*16*4096 + m*32}")
                A(f"buffer_store_dwordx2 v[{a}:{a+1}], v{vT+1}, s[28:31], s18 offen")
    return gen_gemm("gemm1_kernel", 64, 160, 5, 256, setup, epilogue, 1280, 1280, lnfuse=True)

def gen_gemm2():
    def setup():
        A("s_load_dwordx2 s[4:5], s[0:1], 96")
        A("s_load_dwordx4 s[24:27], s[0:1], 8")
        A("s_and_b32 s16, s2, 3")
        A("s_bfe_u32 s17, s2, 0x20003")
        A("s_lshr_b32 s19, s2, 5")
        A("s_bfe_u32 s18, s2, 0x10002")
        A("s_lshl_b32 s18, s18, 3")
        A("s_add_u32 s19, s19, s18")
        A("s_waitcnt lgkmcnt(0)")
        A("s_lshr_b32 s18, s16, 1")
        A("s_mul_i32 s18, s18, 640")
        A("s_mul_i32 s20, s17, 160")
        A("s_add_u32 s18, s18, s20")
        A("s_lshl_b32 s18, s18, 12")
        A("s_and_b32 s20, s16, 1")
        A("s_lshl_b32 s21, s20, 11")
        A("s_add_u32 s18, s18, s21")
        A(f"s_add_u32 s20, s18, {WS_ABT}")
        A("s_add_u32 s8, s4, s20")
        A("s_addc_u32 s9, s5, 0")
        A(f"s_sub_u32 s10, {1280*2048*2}, s18")
        A("s_mov_b32 s11, 0x00020000")
        A("s_cmp_lt_u32 s16, 2")
        A("s_cselect_b32 s12, s24, s26")
        A("s_cselect_b32 s13, s25, s27")
        A("s_lshl_b32 s18, s19, 19")
        A("s_add_u32 s18, s18, s21")
        A("s_add_u32 s12, s12, s18")
        A("s_addc_u32 s13, s13, 0")
        A(f"s_sub_u32 s14, {S*S*2}, s18")
        A("s_mov_b32 s15, 0x00020000")
        srd(28, 4, 4*S*D*2, WS_P)
    def epilogue(MT, NT, acc0, vT):
        A(f"v_lshrrev_b32 v{vT}, 6, v0")
        A(f"v_and_b32 v{vT+1}, 15, v0")
        A(f"v_and_b32 v{vT+2}, 1, v{vT}")
        A(f"v_lshl_add_u32 v{vT+1}, v{vT+2}, 6, v{vT+1}")
        A("s_lshl_b32 s18, s19, 7")
        A("s_lshl_b32 s20, s16, 11")
        A("s_add_u32 s18, s18, s20")
        A(f"v_add_u32 v{vT+1}, s18, v{vT+1}")
        A(f"v_mul_u32_u24 v{vT+1}, 1280, v{vT+1}")
        A(f"v_lshrrev_b32 v{vT+2}, 1, v{vT}")
        A(f"v_mul_u32_u24 v{vT+2}, 80, v{vT+2}")
        A(f"v_bfe_u32 v{vT+3}, v0, 4, 2")
        A(f"v_lshl_add_u32 v{vT+2}, v{vT+3}, 2, v{vT+2}")
        A("s_mul_i32 s18, s17, 160")
        A(f"v_add_u32 v{vT+2}, s18, v{vT+2}")
        A(f"v_lshl_add_u32 v{vT+1}, v{vT+2}, 1, v{vT+1}")
        for m in range(MT):
            for n in range(NT):
                a = acc0 + (m*NT+n)*4
                A(f"v_cvt_pk_bf16_f32 v{a}, v{a}, v{a+1}")
                A(f"v_cvt_pk_bf16_f32 v{a+1}, v{a+2}, v{a+3}")
                A(f"s_mov_b32 s18, {n*16*1280 + m*32}")
                A(f"buffer_store_dwordx2 v[{a}:{a+1}], v{vT+1}, s[28:31], s18 offen")
    return gen_gemm("gemm2_kernel", 160, 128, 8, 256, setup, epilogue, 4096, 4096)

def gen_k3():
    name = "ln2_kernel"
    kstart(name)
    A("s_cmp_ge_u32 s2, 512")
    A("s_cbranch_scc1 L_k3_end")
    A("s_load_dwordx2 s[4:5], s[0:1], 0")
    A("s_load_dwordx2 s[6:7], s[0:1], 96")
    A("s_load_dwordx2 s[40:41], s[0:1], 48")
    A("s_load_dwordx2 s[42:43], s[0:1], 80")
    A("v_lshrrev_b32 v1, 6, v0")
    A("v_and_b32 v2, 63, v0")
    A("s_lshl_b32 s3, s2, 2")
    A("v_add_u32 v1, s3, v1")
    A("v_mul_u32_u24 v3, 1280, v1")
    A("v_lshl_add_u32 v3, v2, 2, v3")
    A("v_lshlrev_b32 v4, 1, v3")
    A("v_lshlrev_b32 v5, 2, v2")
    A("s_waitcnt lgkmcnt(0)")
    srd(8, 4, S*D*2)
    srd(12, 6, 4*S*D*2, WS_P)
    srd(16, 40, D*2)
    srd(44, 42, S*D*2)
    srd(48, 6, S*D*2, WS_H)
    srd(52, 6, S*D*2, WS_LN2)
    srd(56, 6, S*4, WS_SC)
    for j in range(5):
        A(f"buffer_load_dword v{10+j}, v3, s[8:11], 0 offen offset:{j*256}")
    for c in range(4):
        A(f"s_mov_b32 s3, {c*S*D*2}")
        for j in range(5):
            A(f"buffer_load_dword v{21+(c*5+j)*2}, v3, s[12:15], s3 offen offset:{j*256}")
    for j in range(5):
        A(f"buffer_load_dword v{60+j}, v5, s[16:19], 0 offen offset:{j*256}")
    A("s_waitcnt vmcnt(0)")
    for c in range(4):
        for j in range(5):
            A(f"v_lshlrev_b32 v{20+(c*5+j)*2}, 16, v{21+(c*5+j)*2}")
            A(f"v_and_b32 v{21+(c*5+j)*2}, 0xffff0000, v{21+(c*5+j)*2}")
    for j in range(5):
        for q in range(2):
            p0, p1, p2, p3 = [20+(c*5+j)*2+q for c in range(4)]
            A(f"v_add_f32 v6, v{p0}, v{p1}")
            bf16r(6, 6)
            A(f"v_add_f32 v7, v{p2}, v{p3}")
            bf16r(7, 7)
            A("v_sub_f32 v6, v6, v7")
            bf16r(6, 6)
            if q == 0:
                A(f"v_lshlrev_b32 v7, 16, v{10+j}")
            else:
                A(f"v_and_b32 v7, 0xffff0000, v{10+j}")
            A("v_add_f32 v6, v7, v6")
            bf16r(70+2*j+q, 6)
    ln_core(70, 80, 90, 20)
    for j in range(5):
        A(f"v_lshlrev_b32 v6, 16, v{60+j}")
        A(f"v_and_b32 v7, 0xffff0000, v{60+j}")
        if j == 0:
            A("v_mul_f32 v8, v6, v80")
        else:
            A(f"v_fmac_f32 v8, v6, v{80+2*j}")
        A(f"v_fmac_f32 v8, v7, v{81+2*j}")
    wave_reduce_add([8], 20)
    bf16r(8, 8)
    A("v_lshlrev_b32 v9, 2, v1")
    A("v_cmp_eq_u32 vcc, 0, v2")
    A("s_and_saveexec_b64 s[60:61], vcc")
    A("buffer_store_dword v8, v9, s[56:59], 0 offen")
    A("s_mov_b64 exec, s[60:61]")
    for j in range(5):
        A(f"v_cvt_pk_bf16_f32 v6, v{70+2*j}, v{71+2*j}")
        A(f"buffer_store_dword v6, v3, s[48:51], 0 offen offset:{j*256}")
        A(f"v_cvt_pk_bf16_f32 v7, v{80+2*j}, v{81+2*j}")
        A(f"buffer_store_dword v7, v3, s[52:55], 0 offen offset:{j*256}")
        A(f"v_add_f32 v8, v{70+2*j}, v{80+2*j}")
        A(f"v_add_f32 v9, v{71+2*j}, v{81+2*j}")
        A(f"v_cvt_pk_bf16_f32 v8, v8, v9")
        A(f"buffer_store_dword v8, v3, s[44:47], 0 offen offset:{j*256}")
    L("L_k3_end")
    A("s_endpgm")
    kdesc(name, 96)

def top8(sc_srd, lds_base, sidx):
    A("v_lshlrev_b32 v1, 5, v0")
    A(f"buffer_load_dwordx4 v[4:7], v1, s[{sc_srd}:{sc_srd+3}], 0 offen")
    A(f"buffer_load_dwordx4 v[8:11], v1, s[{sc_srd}:{sc_srd+3}], 0 offen offset:16")
    A("v_lshlrev_b32 v2, 3, v0")
    A("v_sub_u32 v2, 2047, v2")
    A("v_lshrrev_b32 v3, 6, v0")
    A(f"v_lshlrev_b32 v3, 2, v3")
    A(f"v_add_u32 v3, {lds_base}, v3")
    A(f"v_mov_b32 v13, {lds_base}")
    A("s_waitcnt vmcnt(0)")
    for i in range(8):
        A(f"v_ashrrev_i32 v12, 31, v{4+i}")
        A(f"v_or_b32 v12, 0x80000000, v12")
        A(f"v_xor_b32 v{4+i}, v{4+i}, v12")
        A(f"v_and_b32 v{4+i}, 0xffff0000, v{4+i}")
        A(f"v_subrev_u32 v12, {i}, v2")
        A(f"v_or_b32 v{4+i}, v{4+i}, v12")
    for r in range(8):
        A("v_max3_u32 v12, v4, v5, v6")
        A("v_max3_u32 v12, v12, v7, v8")
        A("v_max3_u32 v12, v12, v9, v10")
        A("v_max_u32 v12, v12, v11")
        A("s_nop 1")
        for mod in ("quad_perm:[1,0,3,2]", "quad_perm:[2,3,0,1]", "row_half_mirror", "row_mirror"):
            A(f"v_max_u32_dpp v12, v12, v12 {mod} row_mask:0xf bank_mask:0xf")
            A("s_nop 1")
        for j in range(4):
            A(f"v_readlane_b32 s{60+j}, v12, {16*j}")
        A("s_max_u32 s60, s60, s61")
        A("s_max_u32 s62, s62, s63")
        A("s_max_u32 s60, s60, s62")
        A("v_mov_b32 v12, s60")
        A(f"ds_write_b32 v3, v12 offset:{(r&1)*16}")
        A("s_waitcnt lgkmcnt(0)")
        A("s_barrier")
        A(f"ds_read_b128 v[16:19], v13 offset:{(r&1)*16}")
        A("s_waitcnt lgkmcnt(0)")
        A("v_max3_u32 v12, v16, v17, v18")
        A("v_max_u32 v12, v12, v19")
        A("s_nop 0")
        A("v_readfirstlane_b32 s60, v12")
        A("s_and_b32 s61, s60, 0x7ff")
        A(f"s_sub_u32 s{sidx+r}, 2047, s61")
        for i in range(8):
            A(f"v_cmp_ne_u32 vcc, s60, v{4+i}")
            A("s_nop 1")
            A(f"v_cndmask_b32 v{4+i}, 0, v{4+i}, vcc")

WS_YP = 52 << 20
def gen_k4():
    name = "ffn1_kernel"
    kstart(name)
    A("s_cmp_ge_u32 s2, 96")
    A("s_cbranch_scc1 L_k4_end")
    A("s_load_dwordx2 s[6:7], s[0:1], 96")
    A("s_load_dwordx4 s[40:43], s[0:1], 56")
    A("s_load_dwordx2 s[44:45], s[0:1], 72")
    A("v_lshrrev_b32 v1, 6, v0")
    A("v_and_b32 v22, 15, v0")
    A("v_bfe_u32 v23, v0, 4, 2")
    A("v_readfirstlane_b32 s47, v1")
    A("s_waitcnt lgkmcnt(0)")
    srd(8, 6, S*4, WS_SC)
    srd(12, 6, S*D*2, WS_LN2)
    srd(16, 40, D*F*2)
    srd(20, 42, D*F*2)
    srd(24, 6, 96*8*D*4, WS_YP)
    srd(28, 6, 32, WS_IDX)
    srd(48, 44, D*F*2)
    RB = 64
    AB = RB + 8192
    A("v_mul_u32_u24 v24, 24576, v23")
    A("v_lshl_add_u32 v24, v22, 1, v24")
    A("s_mul_i32 s52, s47, 491520")
    A("s_lshl_b32 s3, s2, 5")
    A("s_add_u32 s52, s52, s3")
    for ks in range(5):
        for j in range(8):
            A(f"s_add_u32 s3, s52, {(32*ks+j)*3072}")
            A(f"buffer_load_ushort v{128+ks*8+j}, v24, s[16:19], s3 offen")
            A(f"buffer_load_ushort v{168+ks*8+j}, v24, s[20:23], s3 offen")
    A("v_mul_u32_u24 v25, 5120, v23")
    A("v_lshl_add_u32 v25, v22, 1, v25")
    A("s_mul_i32 s53, s2, 20480")
    A("s_mul_i32 s3, s47, 320")
    A("s_add_u32 s53, s53, s3")
    for nt in range(10):
        for j in range(4):
            A(f"s_add_u32 s3, s53, {j*1280 + nt*32}")
            A(f"buffer_load_ushort v{208+nt*4+j}, v25, s[48:51], s3 offen")
    top8(8, 0, 32)
    A("v_mov_b32 v20, s32")
    for t in range(1, 8):
        A(f"v_cmp_eq_u32 vcc, {t}, v22")
        A(f"v_mov_b32 v2, s{32+t}")
        A("v_cndmask_b32 v20, v20, v2, vcc")
    A("s_cmp_lg_u32 s2, 0")
    A("s_cbranch_scc1 L_k4_noidx")
    A("v_cmp_gt_u32 vcc, 8, v0")
    A("s_and_saveexec_b64 s[60:61], vcc")
    A("v_lshlrev_b32 v2, 2, v0")
    A("buffer_store_dword v20, v2, s[28:31], 0 offen")
    A("s_mov_b64 exec, s[60:61]")
    L("L_k4_noidx")
    A("v_mul_u32_u24 v21, 1280, v20")
    A("v_lshl_add_u32 v21, v23, 4, v21")
    A("s_mul_i32 s3, s47, 320")
    for ks in range(5):
        A(f"buffer_load_dwordx4 v[{100+ks*4}:{103+ks*4}], v21, s[12:15], s3 offen offset:{ks*64}")
    A("s_waitcnt vmcnt(0)")
    for i in range(20):
        A(f"v_lshl_or_b32 v{40+i}, v{129+2*i}, 16, v{128+2*i}")
        A(f"v_lshl_or_b32 v{60+i}, v{169+2*i}, 16, v{168+2*i}")
        A(f"v_lshl_or_b32 v{80+i}, v{209+2*i}, 16, v{208+2*i}")
    A("s_nop 1")
    for ks in range(5):
        c0 = "0" if ks == 0 else "v[120:123]"
        c1 = "0" if ks == 0 else "v[124:127]"
        A(f"v_mfma_f32_16x16x32_bf16 v[120:123], v[{100+ks*4}:{103+ks*4}], v[{40+ks*4}:{43+ks*4}], {c0}")
        A(f"v_mfma_f32_16x16x32_bf16 v[124:127], v[{100+ks*4}:{103+ks*4}], v[{60+ks*4}:{63+ks*4}], {c1}")
    A("v_and_b32 v1, 63, v0")
    A("v_lshlrev_b32 v1, 5, v1")
    A("s_lshl_b32 s3, s47, 11")
    A("v_add_u32 v2, s3, v1")
    A("s_nop 7")
    A(f"ds_write_b128 v2, v[120:123] offset:{RB}")
    A(f"ds_write_b128 v2, v[124:127] offset:{RB+16}")
    A("s_waitcnt lgkmcnt(0)")
    A("s_barrier")
    for w in range(4):
        A(f"ds_read_b128 v[{40+w*8}:{43+w*8}], v1 offset:{RB + w*2048}")
        A(f"ds_read_b128 v[{44+w*8}:{47+w*8}], v1 offset:{RB + w*2048 + 16}")
    A("s_waitcnt lgkmcnt(0)")
    for i in range(8):
        A(f"v_add_f32 v{40+i}, v{40+i}, v{48+i}")
        A(f"v_add_f32 v{56+i}, v{56+i}, v{64+i}")
        A(f"v_add_f32 v{40+i}, v{40+i}, v{56+i}")
    A("s_lshl_b32 s3, s47, 9")
    A("v_lshlrev_b32 v2, 7, v23")
    A("v_lshl_add_u32 v2, v22, 1, v2")
    A("v_add_u32 v2, s3, v2")
    for r in range(4):
        g, u = 40 + r, 44 + r
        bf16r(g, g)
        bf16r(u, u)
        A(f"v_mul_f32 v9, 0xbfb8aa3b, v{g}")
        A("v_exp_f32 v9, v9")
        A("s_nop 0")
        A("v_add_f32 v9, 1.0, v9")
        A("v_rcp_f32 v9, v9")
        A("s_nop 0")
        A(f"v_mul_f32 v9, v{g}, v9")
        bf16r(9, 9)
        A(f"v_mul_f32 v9, v9, v{u}")
        A("v_cvt_pk_bf16_f32 v9, v9, v9")
        A(f"ds_write_b16 v2, v9 offset:{AB + r*32}")
    A("v_lshlrev_b32 v3, 5, v22")
    A("v_lshl_add_u32 v3, v23, 3, v3")
    A("v_add_u32 v3, s3, v3")
    A("s_waitcnt lgkmcnt(0)")
    A(f"ds_read_b64 v[10:11], v3 offset:{AB}")
    A("v_mul_u32_u24 v4, 2560, v22")
    A("v_lshl_add_u32 v4, v23, 4, v4")
    A("s_mul_i32 s53, s2, 20480")
    A("s_mul_i32 s3, s47, 640")
    A("s_add_u32 s53, s53, s3")
    A("s_waitcnt lgkmcnt(0)")
    for nt in range(10):
        A(f"v_mfma_f32_16x16x16_bf16 v[{40+nt*4}:{43+nt*4}], v[{80+nt*2}:{81+nt*2}], v[10:11], 0")
    A("v_cmp_gt_u32 vcc, 8, v22")
    A("s_and_saveexec_b64 s[60:61], vcc")
    A("s_nop 7")
    for nt in range(10):
        A(f"s_add_u32 s3, s53, {nt*64}")
        A(f"buffer_store_dwordx4 v[{40+nt*4}:{43+nt*4}], v4, s[24:27], s3 offen")
    A("s_mov_b64 exec, s[60:61]")
    L("L_k4_end")
    A("s_endpgm")
    kdesc(name, 248)
    return AB + 2048

def gen_k5():
    name = "ffn2_kernel"
    kstart(name)
    A("s_cmp_ge_u32 s2, 20")
    A("s_cbranch_scc1 L_k5_end")
    A("s_load_dwordx2 s[6:7], s[0:1], 96")
    A("s_load_dwordx2 s[42:43], s[0:1], 80")
    A("s_waitcnt lgkmcnt(0)")
    srd(8, 6, S*4, WS_SC)
    srd(12, 6, S*D*2, WS_LN2)
    srd(20, 42, S*D*2)
    srd(24, 6, 96*8*D*4, WS_YP)
    srd(28, 6, 32, WS_IDX)
    srd(44, 6, S*D*2, WS_H)
    A("s_lshl_b32 s3, s2, 8")
    A("v_add_u32 v1, s3, v0")
    A("v_mul_u32_u24 v2, 0x199a, v1")
    A("v_lshrrev_b32 v2, 22, v2")
    A("v_mul_u32_u24 v3, 640, v2")
    A("v_sub_u32 v3, v1, v3")
    A("v_lshlrev_b32 v4, 2, v2")
    A("buffer_load_dword v5, v4, s[28:31], 0 offen")
    A("v_lshlrev_b32 v1, 2, v1")
    for g in range(96):
        A(f"s_mov_b32 s3, {g*20480}")
        A(f"buffer_load_dword v{16+g}, v1, s[24:27], s3 offen")
    A("s_waitcnt vmcnt(63)")
    A("s_waitcnt vmcnt(0)")
    A("v_lshlrev_b32 v6, 2, v5")
    A("buffer_load_dword v9, v6, s[8:11], 0 offen")
    A("v_mul_u32_u24 v6, 1280, v5")
    A("v_lshl_add_u32 v6, v3, 1, v6")
    A("buffer_load_ushort v10, v6, s[12:15], 0 offen")
    A("buffer_load_ushort v11, v6, s[44:47], 0 offen")
    for g in range(1, 96):
        A(f"v_add_f32 v16, v16, v{16+g}")
    bf16r(8, 16)
    A("s_waitcnt vmcnt(0)")
    A("v_mul_f32 v9, 0xbfb8aa3b, v9")
    A("v_exp_f32 v9, v9")
    A("s_nop 0")
    A("v_add_f32 v9, 1.0, v9")
    A("v_rcp_f32 v9, v9")
    A("s_nop 0")
    bf16r(9, 9)
    A("v_mul_f32 v8, v8, v9")
    bf16r(8, 8)
    A("v_lshlrev_b32 v10, 16, v10")
    A("v_lshlrev_b32 v11, 16, v11")
    A("v_add_f32 v8, v10, v8")
    bf16r(8, 8)
    A("v_add_f32 v8, v11, v8")
    A("v_cvt_pk_bf16_f32 v8, v8, v8")
    A("buffer_store_short v8, v6, s[20:23], 0 offen")
    L("L_k5_end")
    A("s_endpgm")
    kdesc(name, 120)
    return 0

hdr = open('sequential_preLN__spectral_fnet__moe_arch_mod__prompt.s.ref').read().split('\n')
hdr = [l for l in hdr if l.startswith(';') and '@launch' not in l]
lds1 = gen_gemm1()
lds2 = gen_gemm2()
gen_k3()
lds4 = gen_k4()
lds5 = gen_k5()
launch = [
    f"; @launch kernel=gemm1_kernel grid=(256,1,1) block=(256,1,1) lds={lds1}",
    f"; @launch kernel=gemm2_kernel grid=(256,1,1) block=(256,1,1) lds={lds2}",
    "; @launch kernel=ln2_kernel grid=(512,1,1) block=(256,1,1) lds=0",
    f"; @launch kernel=ffn1_kernel grid=(96,1,1) block=(256,1,1) lds={lds4}",
    f"; @launch kernel=ffn2_kernel grid=(20,1,1) block=(256,1,1) lds={lds5}",
]
txt = "\n".join(hdr + launch + ['.amdgcn_target "amdgcn-amd-amdhsa--gfx950"', ".text"] + out +
                ['.section .rodata,"a"'] + descs) + "\n"
open(sys.argv[1] if len(sys.argv) > 1 else 'sequential_preLN__spectral_fnet__moe_arch_mod__prompt.s', 'w').write(txt)
print("ok", len(txt))
```
